```python
import torch

def _softmax(x, axis=-1):
    return torch.softmax(x, dim=axis)
def _gelu(x):
    return torch.nn.functional.gelu(x, approximate="tanh")
def _silu(x):
    return torch.nn.functional.silu(x)
def _sigmoid(x):
    return torch.sigmoid(x)
def _layernorm(x, axis=-1, eps=1e-5):
    m = x.mean(dim=axis, keepdim=True)
    v = x.var(dim=axis, keepdim=True, unbiased=False)
    return (x - m) / torch.sqrt(v + eps)
def _scatter_add(tgt, idx, src, axis=0):
    return tgt.clone().index_add_(axis, idx, src)
def _segment_sum(src, seg, n):
    out = torch.zeros((n,) + src.shape[1:], dtype=src.dtype)
    return out.index_add_(0, seg, src)
def _pad(x, pw):
    flat = tuple(v for pair in reversed(pw) for v in pair)
    return torch.nn.functional.pad(x, flat)

kernel_name = 'gated_mix__sliding_block_cached__sliding_block_cached__decode'

def setup_inputs():

    _w = (lambda a: (lambda t: t.to(torch.bfloat16) if t.is_floating_point() else t)(torch.as_tensor(a)))
    def _A_setup():
        B, Sq, D = 1, 1, 512
        Hq, Hkv, Sk, Dh = 32, 8, 32768, 128
        assert Hq % Hkv == 0, (Hq, Hkv)
        return {
            "x": _w((lambda *s: torch.randn(*s, dtype=torch.bfloat16) * 0.05)(B, Sq, D)),
            "k_cache": _w((lambda *s: torch.randn(*s, dtype=torch.bfloat16) * 6.4)(B, Hkv, Sk, Dh)),
            "v_cache": _w((lambda *s: torch.randn(*s, dtype=torch.bfloat16) * 0.05)(B, Hkv, Sk, Dh)),
            "wq": _w((lambda *s: torch.randn(*s, dtype=torch.bfloat16) * 6.4)(D, Hq * Dh) * (D ** -0.5)),
            "wo": _w((lambda *s: torch.randn(*s, dtype=torch.bfloat16) * 0.05)(Hq * Dh, D) * ((Hq * Dh) ** -0.5)),
        }
    _A_in = _A_setup()

    def _B_setup():
        B, Sq, D = 1, 1, 512
        Hq, Hkv, Sk, Dh = 32, 8, 32768, 128
        assert Hq % Hkv == 0, (Hq, Hkv)
        return {
            "x": _w((lambda *s: torch.randn(*s, dtype=torch.bfloat16) * 0.05)(B, Sq, D)),
            "k_cache": _w((lambda *s: torch.randn(*s, dtype=torch.bfloat16) * 6.4)(B, Hkv, Sk, Dh)),
            "v_cache": _w((lambda *s: torch.randn(*s, dtype=torch.bfloat16) * 0.05)(B, Hkv, Sk, Dh)),
            "wq": _w((lambda *s: torch.randn(*s, dtype=torch.bfloat16) * 6.4)(D, Hq * Dh) * (D ** -0.5)),
            "wo": _w((lambda *s: torch.randn(*s, dtype=torch.bfloat16) * 0.05)(Hq * Dh, D) * ((Hq * Dh) ** -0.5)),
        }
    _B_in = _B_setup()

    return {
        "A_x": _A_in["x"],
        "A_k_cache": _A_in["k_cache"],
        "A_v_cache": _A_in["v_cache"],
        "A_wq": _A_in["wq"],
        "A_wo": _A_in["wo"],
        "B_x": _B_in["x"],
        "B_k_cache": _B_in["k_cache"],
        "B_v_cache": _B_in["v_cache"],
        "B_wq": _B_in["wq"],
        "B_wo": _B_in["wo"],
        "gate_w": _w((lambda *s: torch.randn(*s, dtype=torch.bfloat16) * 0.05)(512) * 16.0),
    }

def reference(A_x, A_k_cache, A_v_cache, A_wq, A_wo, B_x, B_k_cache, B_v_cache, B_wq, B_wo, gate_w):
    def _A_ref(x, k_cache, v_cache, wq, wo):
        B, Sq, D = x.shape
        Hq, Dh = 32, 128
        Hkv, Sk = k_cache.shape[1], k_cache.shape[2]
        W = min(4096, max(256, Sk // 4))
        rep = Hq // Hkv
        q = (lambda x, *d: x.permute(*d))((x @ wq).reshape(B, Sq, Hq, Dh), 0, 2, 1, 3)
        k = (lambda x, n, axis: torch.repeat_interleave(x, n, dim=axis))(k_cache[:, :, Sk - W:, :], rep, axis=1)
        v = (lambda x, n, axis: torch.repeat_interleave(x, n, dim=axis))(v_cache[:, :, Sk - W:, :], rep, axis=1)
        scores = torch.einsum("bhqd,bhkd->bhqk", q, k) * (Dh ** -0.5)
        p = _softmax(scores, axis=-1)
        o = torch.einsum("bhqk,bhkd->bhqd", p, v)
        return (lambda x, *d: x.permute(*d))(o, 0, 2, 1, 3).reshape(B, Sq, Hq * Dh) @ wo

    def _B_ref(x, k_cache, v_cache, wq, wo):
        B, Sq, D = x.shape
        Hq, Dh = 32, 128
        Hkv, Sk = k_cache.shape[1], k_cache.shape[2]
        W = min(4096, max(256, Sk // 4))
        rep = Hq // Hkv
        q = (lambda x, *d: x.permute(*d))((x @ wq).reshape(B, Sq, Hq, Dh), 0, 2, 1, 3)
        k = (lambda x, n, axis: torch.repeat_interleave(x, n, dim=axis))(k_cache[:, :, Sk - W:, :], rep, axis=1)
        v = (lambda x, n, axis: torch.repeat_interleave(x, n, dim=axis))(v_cache[:, :, Sk - W:, :], rep, axis=1)
        scores = torch.einsum("bhqd,bhkd->bhqk", q, k) * (Dh ** -0.5)
        p = _softmax(scores, axis=-1)
        o = torch.einsum("bhqk,bhkd->bhqd", p, v)
        return (lambda x, *d: x.permute(*d))(o, 0, 2, 1, 3).reshape(B, Sq, Hq * Dh) @ wo

    x = A_x
    g = _sigmoid((x * gate_w).sum(-1, keepdims=True))
    a = _A_ref(x, A_k_cache, A_v_cache, A_wq, A_wo)
    b = _B_ref(x, B_k_cache, B_v_cache, B_wq, B_wo)
    return g * a + (1 - g) * b
```

```python
import re

TRANS = ("v_exp_f32", "v_log_f32", "v_rcp_f32", "v_rsq_f32", "v_sqrt_f32", "v_sin_f32", "v_cos_f32")

def _regs(tok):
    tok = tok.strip()
    if tok.startswith("-"): tok = tok[1:]
    if tok.startswith("|") and tok.endswith("|"): tok = tok[1:-1]
    m = re.fullmatch(r"([vsa])(\d+)", tok)
    if m: return [(m.group(1), int(m.group(2)))]
    m = re.fullmatch(r"([vsa])\[(\d+):(\d+)\]", tok)
    if m: return [(m.group(1), i) for i in range(int(m.group(2)), int(m.group(3)) + 1)]
    if tok == "vcc": return [("s", 106), ("s", 107)]
    if tok == "vcc_lo": return [("s", 106)]
    if tok == "vcc_hi": return [("s", 107)]
    if tok == "exec": return [("s", 126), ("s", 127)]
    if tok == "exec_lo": return [("s", 126)]
    if tok == "exec_hi": return [("s", 127)]
    if tok == "m0": return [("s", 124)]
    return []

class Ins:
    def __init__(self, text):
        self.text = text
        t = text.split(";")[0].strip()
        self.is_label = t.endswith(":")
        self.is_dir = t.startswith(".") or t == ""
        self.op = ""
        self.dst = set(); self.src = set()
        self.kind = "other"
        self.dpp = False
        self.nops = 1
        if self.is_label or self.is_dir:
            self.nops = 0
            return
        parts = t.split(None, 1)
        op = parts[0]; self.op = op
        rest = parts[1] if len(parts) > 1 else ""
        ops = [o.strip() for o in rest.split(",")] if rest else []
        mods = ""
        if ops:
            joined = []; depth = 0; cur = ""
            for ch in rest:
                if ch == "[": depth += 1
                if ch == "]": depth -= 1
                if ch == "," and depth == 0:
                    joined.append(cur.strip()); cur = ""
                else:
                    cur += ch
            joined.append(cur.strip())
            ops = joined
            last = ops[-1].split(None, 1)
            if len(last) > 1:
                ops[-1] = last[0]; mods = last[1]
        self.ops = ops; self.mods = mods
        R = [_regs(o) for o in ops]
        allmods = mods + " " + op
        self.dpp = ("_dpp" in op) or any(k in mods for k in ("row_ror", "row_shr", "row_shl", "quad_perm", "row_newbcast", "row_bcast", "row_mirror", "row_half_mirror"))
        if op == "s_nop":
            self.kind = "nop"; self.nops = int(ops[0], 0) + 1
        elif op.startswith("v_mfma"):
            self.kind = "mfma"
            self.dst = set(R[0]); self.srcA = set(R[1]); self.srcB = set(R[2]); self.srcC = set(R[3])
            self.src = self.srcA | self.srcB | self.srcC
        elif op.startswith("v_"):
            self.kind = "valu"
            base = op.replace("_e32", "").replace("_e64", "").replace("_dpp", "").replace("_sdwa", "")
            self.base = base
            if base.startswith("v_cmp"):
                self.dst = set(R[0]); self.src = set(x for r in R[1:] for x in r)
            elif base in ("v_readlane_b32", "v_readfirstlane_b32"):
                self.dst = set(R[0]); self.src = set(x for r in R[1:] for x in r)
            elif base.startswith("v_permlane") and "swap" in base:
                self.dst = set(R[0]) | set(R[1]); self.src = set(self.dst)
            elif base in ("v_add_co_u32", "v_sub_co_u32", "v_addc_co_u32", "v_subb_co_u32"):
                self.dst = set(R[0]) | set(R[1]); self.src = set(x for r in R[2:] for x in r)
            elif base == "v_cndmask_b32":
                self.dst = set(R[0]); self.src = set(x for r in R[1:] for x in r)
                if len(ops) == 3: self.src |= {("s", 106), ("s", 107)}
            else:
                self.dst = set(R[0]); self.src = set(x for r in R[1:] for x in r)
                if base in ("v_fmac_f32", "v_mac_f32", "v_dot2c_f32_bf16", "v_pk_fmac_f16"):
                    self.src |= self.dst
                if self.dpp and ("bank_mask" in mods or "row_mask" in mods):
                    pass
            self.trans = base in TRANS
        elif op.startswith("buffer_") or op.startswith("global_"):
            self.kind = "vmem"
            if "load" in op:
                self.dst = set(R[0]); self.src = set(x for r in R[1:] for x in r)
                self.store = False
            else:
                self.store = True
                if op.startswith("buffer_"):
                    self.data = set(R[0])
                else:
                    self.data = set(R[1])
                self.src = set(x for r in R for x in r)
                self.wide = ("x4" in op) or ("x3" in op)
        elif op.startswith("ds_"):
            self.kind = "ds"
            if op.startswith("ds_read") or "permute" in op or op.endswith("_rtn_b32") or "_rtn_" in op:
                self.dst = set(R[0]); self.src = set(x for r in R[1:] for x in r)
            else:
                self.src = set(x for r in R for x in r)
        elif op.startswith("s_"):
            self.kind = "salu"
            if op.startswith("s_cmp") or op.startswith("s_cbranch") or op in ("s_branch", "s_waitcnt", "s_barrier", "s_endpgm", "s_sleep", "s_setprio", "s_bitcmp1_b32", "s_bitcmp0_b32"):
                self.src = set(x for r in R for x in r)
            else:
                self.dst = set(R[0]) if R else set(); self.src = set(x for r in R[1:] for x in r)

def need(prod, cons):
    n = 0
    pv = set(x for x in prod.dst if x[0] in "va")
    ps = set(x for x in prod.dst if x[0] == "s")
    if prod.kind == "valu":
        cv = set(x for x in cons.src if x[0] in "va")
        cs = set(x for x in cons.src if x[0] == "s")
        if cons.kind == "valu":
            if cons.dpp and (pv & cv): n = max(n, 2)
            if cons.base.startswith("v_permlane") and (pv & cv): n = max(n, 2)
            if cons.base in ("v_readlane_b32", "v_readfirstlane_b32"):
                if pv & cv: n = max(n, 1)
                if cons.base == "v_readlane_b32" and (ps & cs): n = max(n, 4)
            if prod.trans and (pv & cv): n = max(n, 1)
            if ps & cs: n = max(n, 2)
            if ("sdwa" in prod.op or "op_sel" in prod.mods) and (pv & (cv | cons.dst)): n = max(n, 1)
        if cons.kind == "mfma":
            if pv & cv: n = max(n, 2)
            if ps & {("s",126),("s",127)}: n = max(n, 4)
        if cons.kind == "vmem":
            if ps & cs: n = max(n, 5)
        if cons.kind in ("vmem", "ds") and prod.trans and (pv & cv): n = max(n, 1)
    if prod.kind == "mfma":
        if cons.kind == "valu":
            if pv & (cons.src | cons.dst): n = max(n, 8)
            if prod.srcC & cons.dst: n = max(n, 3)
        elif cons.kind == "mfma":
            if pv & (cons.srcA | cons.srcB): n = max(n, 8)
            if pv & cons.srcC:
                if cons.srcC == pv: pass
                else: n = max(n, 6)
            if (pv & cons.dst) and cons.dst != pv: n = max(n, 6)
        elif cons.kind in ("vmem", "ds"):
            if pv & (cons.src | cons.dst): n = max(n, 8)
    if prod.kind == "vmem" and getattr(prod, "store", False) and prod.wide:
        if cons.kind == "valu" and (prod.data & cons.dst): n = max(n, 2)
        elif cons.kind in ("mfma",) and (prod.data & cons.dst): n = max(n, 2)
        elif (prod.data & cons.dst): n = max(n, 1)
    if prod.kind == "salu" and cons.kind in ("ds", "vmem") and (("s", 124) in prod.dst) and "lds" in cons.text: n = max(n, 1)
    return n

class Prog:
    def __init__(self):
        self.lines = []
    def __call__(self, text):
        for t in text.strip().split("\n"):
            t = t.strip()
            if t: self.lines.append(t)
    def label(self, name): self.lines.append(name + ":")
    def finish(self, verbose=False):
        out = []
        nins = 0
        for t in self.lines:
            ins = Ins(t)
            if ins.is_label:
                out.append(ins); continue
            if ins.is_dir:
                out.append(ins); continue
            req = 0; dist = 0
            for prev in reversed(out):
                if prev.is_label or prev.is_dir: continue
                if dist >= 12: break
                r = need(prev, ins)
                if r > dist: req = max(req, r - dist)
                dist += prev.nops
            if req > 0:
                out.append(Ins(f"s_nop {req - 1}")); nins += req
            out.append(ins)
        if verbose: print("inserted wait states:", nins)
        return "\n".join(("" if (i.is_label or i.is_dir) else "    ") + i.text for i in out) + "\n"
```

```python
import sys, argparse
sys.path.insert(0, "gen")
from asmlib import Prog

KNAME = "gated_mix__sliding_block_cached__sliding_block_cached__decode_kernel"

QP_OFF = 0x10000; OP_OFF = 0x50000; ST_OFF = 0xD0000; FIN_OFF = 0xD8000; PROF_OFF = 0x100000
WS_REC = 0x200000
L_QRED = 0; L_QL = 2048; L_MX = 3200; L_LS = 3328; L_ORED = 4096
ORED_H = 544; ORED_W = 4 * ORED_H
LDS_BYTES = L_ORED + 4 * ORED_W

S_WQ, S_K, S_V, S_X, S_WS, S_WO, S_G, S_OUT = 32, 36, 40, 44, 48, 52, 56, 60
def srd(b): return f"s[{b}:{b+3}]"
CONST = {4096: 64, 8192: 65, 12288: 66, 16384: 67, 20480: 68, 24576: 69, 28672: 70, 32768: 71, 40960: 72, 49152: 73, 57344: 74}
def soff(x): return "0" if x == 0 else f"s{CONST[x]}"
sP, sS, sW, sE, sMASK, sLOG2E = 75, 76, 77, 78, 79, 80
sSCL = 82
sCNT = 84; sT0 = 85; sT1 = 86; sT2 = 87
sQPST, sQPLD, sOPST, sOPLD, sSTST, sSTLD, sFINST, sFINLD, sXOFF = 88, 89, 90, 91, 92, 93, 94, 95, 96
sHI = 97
sT3 = 98; sT4 = 99

vL, vWq, vK, vV, vTau, vXs = 1, 2, 3, 4, 5, 6
vM = 8
vWo = 7
vQa, vQw, vQr, vMx, vLs, vOw, vOr = 12, 13, 14, 15, 16, 17, 18
vL16 = 19
vT = 20
vCoef = 31
W = 32; K = 64; V = 128; X = 192

def v(i, n=1): return f"v{i}" if n == 1 else f"v[{i}:{i+n-1}]"

def ror(n):
    n &= 15
    return "quad_perm:[0,1,2,3]" if n == 0 else f"row_ror:{n}"

class G:
    def __init__(self, prof=False, nt=False, opts=None):
        self.P = Prog(); self.prof = prof; self.nst = 0
        self.nt = " nt" if nt else ""
        self.o = opts or {}

    def stamp(self, name):
        if not self.prof: return
        i = self.nst; self.nst += 1
        assert i < 14
        self.P(f"s_memrealtime s[{4+2*i}:{5+2*i}]")
        self.stnames.append(name)

    def tagcheck(self, regs, acc):
        P = self.P
        P(f"v_xor_b32 {v(acc)}, {v(regs[0])}, {v(vTau)}")
        for r in regs[1:]:
            P(f"v_bitop3_b32 {v(acc)}, {v(acc)}, {v(r)}, {v(vTau)} bitop3:0xf6")
        P(f"v_cmp_ne_u32_sdwa vcc, {v(acc)}, 0 src0_sel:BYTE_0 src1_sel:DWORD")

    def gen(self):
        P = self.P; nt = self.nt
        self.stnames = []
        P(f"s_cmp_ge_u32 s2, 256")
        P(f"s_cbranch_scc1 L_END")
        P("s_load_dwordx16 s[4:19], s[0:1], 0")
        P("s_load_dwordx8 s[20:27], s[0:1], 64")
        P("s_load_dwordx4 s[28:31], s[0:1], 96")
        if self.prof:
            P("s_memrealtime s[100:101]")
        t0, t1, t2, t3 = vT, vT+1, vT+2, vT+3
        P(f"v_and_b32 {v(vL)}, 63, v0")
        P(f"v_lshrrev_b32 {v(t0)}, 4, v0")
        P(f"v_and_b32 {v(t1)}, 15, v0")
        P(f"v_lshlrev_b32 {v(t1)}, 4, {v(t1)}")
        P(f"v_lshl_or_b32 {v(vWq)}, {v(t0)}, 16, {v(t1)}")
        P(f"v_and_b32 {v(t2)}, 7, v0")
        P(f"v_lshlrev_b32 {v(t2)}, 1, {v(t2)}")
        P(f"v_lshl_or_b32 {v(vXs)}, {v(t0)}, 4, {v(t2)}")
        P(f"v_lshlrev_b32 {v(vL16)}, 4, {v(vL)}")
        P(f"v_lshrrev_b32 {v(t0)}, 6, v0")
        P(f"v_lshl_or_b32 {v(vV)}, {v(t0)}, 12, {v(vL16)}")
        P(f"v_and_b32 {v(t2)}, 3, {v(vL)}")
        P(f"v_lshlrev_b32 {v(t2)}, 4, {v(t2)}")
        P(f"v_bfe_u32 {v(t3)}, {v(vL)}, 2, 2")
        P(f"v_lshl_or_b32 {v(t2)}, {v(t3)}, 8, {v(t2)}")
        P(f"v_lshrrev_b32 {v(t3)}, 4, {v(vL)}")
        P(f"v_lshl_or_b32 {v(t2)}, {v(t3)}, 6, {v(t2)}")
        P(f"v_lshl_or_b32 {v(vK)}, {v(t0)}, 12, {v(t2)}")
        P(f"v_readfirstlane_b32 s{sW}, {v(t0)}")
        P(f"s_and_b32 s{sP}, s2, 15")
        P(f"s_lshr_b32 s{sS}, s2, 4")
        P(f"s_and_b32 s{sT0}, s2, 7")
        P(f"s_lshr_b32 s{sT1}, s2, 6")
        P(f"s_and_b32 s{sT2}, s{sS}, 3")
        P(f"s_lshl_b32 s{sT3}, s{sT0}, 2")
        P(f"s_add_u32 s{sT3}, s{sT3}, s{sT2}")
        P(f"s_lshl_b32 s{sT3}, s{sT3}, 8")
        P(f"s_lshl_b32 s{sT4}, s{sT1}, 20")
        P(f"s_add_u32 s{sT3}, s{sT3}, s{sT4}")
        P(f"s_lshl_b32 s{sT4}, s{sT0}, 23")
        P(f"s_lshl_b32 s{sCNT}, s{sS}, 16")
        P(f"s_add_u32 s{sT4}, s{sT4}, s{sCNT}")
        P(f"s_add_u32 s{sT4}, s{sT4}, 7340032")
        P(f"s_lshl_b32 s{sXOFF}, s{sT1}, 8")
        for c, r in CONST.items():
            P(f"s_mov_b32 s{r}, {c}")
        for b, n in ((S_WQ, 0x100000), (S_K, 65536), (S_V, 65536), (S_X, 1024), (S_WS, WS_REC), (S_WO, 0x20000), (S_G, 1024), (S_OUT, 1024)):
            P(f"s_mov_b32 s{b+2}, {n}")
            P(f"s_mov_b32 s{b+3}, 0x00020000")
        P("s_waitcnt lgkmcnt(0)")
        P(f"s_load_dword s{sE}, s[30:31], 0")
        P(f"s_mov_b64 s[{S_X}:{S_X+1}], s[4:5]")
        P("s_bitcmp1_b32 s2, 3")
        P(f"s_cselect_b64 s[{S_WQ}:{S_WQ+1}], s[20:21], s[10:11]")
        P(f"s_cselect_b64 s[{S_K}:{S_K+1}], s[16:17], s[6:7]")
        P(f"s_cselect_b64 s[{S_V}:{S_V+1}], s[18:19], s[8:9]")
        P(f"s_cselect_b64 s[{S_WO}:{S_WO+1}], s[22:23], s[12:13]")
        P(f"s_cmp_lg_u32 s{sS}, 0")
        P("s_cbranch_scc1 L_GL_DONE")
        P(f"s_mov_b64 s[{S_G}:{S_G+1}], s[24:25]")
        P(f"buffer_load_dwordx4 {v(V+32,4)}, {v(vL16)}, {srd(S_X)}, 0 offen")
        P(f"buffer_load_dwordx4 {v(V+36,4)}, {v(vL16)}, {srd(S_G)}, 0 offen")
        P.label("L_GL_DONE")
        P(f"buffer_load_ushort {v(vT+8)}, {v(vXs)}, {srd(S_X)}, s{sXOFF} offen")
        P(f"s_add_u32 s{S_WQ}, s{S_WQ}, s{sT3}")
        P(f"s_addc_u32 s{S_WQ+1}, s{S_WQ+1}, 0")
        for t in range(8):
            P(f"buffer_load_dwordx4 {v(W+4*t,4)}, {v(vWq)}, {srd(S_WQ)}, {soff(8192*t)} offen{nt}")
        P(f"s_add_u32 s{S_K}, s{S_K}, s{sT4}")
        P(f"s_addc_u32 s{S_K+1}, s{S_K+1}, 0")
        for n in range(16):
            P(f"buffer_load_dwordx4 {v(K+4*n,4)}, {v(vK)}, {srd(S_K)}, {soff(16384*(n>>2))} offen offset:{1024*(n&3)}{nt}")
        P(f"s_add_u32 s{S_V}, s{S_V}, s{sT4}")
        P(f"s_addc_u32 s{S_V+1}, s{S_V+1}, 0")
        for n in range(8):
            P(f"buffer_load_dwordx4 {v(V+4*n,4)}, {v(vV)}, {srd(S_V)}, {soff(16384*(n>>2))} offen offset:{1024*(n&3)}{nt}")
        P(f"s_mov_b64 s[{S_WS}:{S_WS+1}], s[30:31]")
        P(f"s_mov_b64 s[{S_OUT}:{S_OUT+1}], s[26:27]")
        P(f"s_lshl_b32 s{sT3}, s{sT0}, 2")
        P(f"s_add_u32 s{sT3}, s{sT3}, s{sT1}")
        P(f"s_lshl_b32 s{sT3}, s{sT3}, 17")
        P(f"s_lshl_b32 s{sT4}, s{sT2}, 8")
        P(f"s_add_u32 s{sT3}, s{sT3}, s{sT4}")
        P(f"s_add_u32 s{S_WO}, s{S_WO}, s{sT3}")
        P(f"s_addc_u32 s{S_WO+1}, s{S_WO+1}, 0")
        P(f"s_lshl_b32 s{sQPLD}, s{sP}, 14")
        P(f"s_add_u32 s{sQPLD}, s{sQPLD}, {QP_OFF}")
        P(f"s_lshl_b32 s{sT3}, s{sT2}, 12")
        P(f"s_lshl_b32 s{sT4}, s{sT1}, 9")
        P(f"s_add_u32 s{sQPST}, s{sQPLD}, s{sT3}")
        P(f"s_add_u32 s{sQPST}, s{sQPST}, s{sT4}")
        P(f"s_lshl_b32 s{sT3}, s{sP}, 2")
        P(f"s_add_u32 s{sT4}, s{sT3}, s{sW}")
        P(f"s_lshl_b32 s{sOPST}, s{sT4}, 13")
        P(f"s_lshl_b32 s{sSTST}, s{sT4}, 8")
        P(f"s_lshl_b32 s{sT4}, s{sS}, 7")
        P(f"s_add_u32 s{sOPST}, s{sOPST}, s{sT4}")
        P(f"s_add_u32 s{sOPST}, s{sOPST}, {OP_OFF}")
        P(f"s_lshl_b32 s{sT4}, s{sS}, 4")
        P(f"s_add_u32 s{sSTST}, s{sSTST}, s{sT4}")
        P(f"s_add_u32 s{sSTST}, s{sSTST}, {ST_OFF}")
        P(f"s_add_u32 s{sT4}, s{sT3}, s{sT1}")
        P(f"s_lshl_b32 s{sOPLD}, s{sT4}, 13")
        P(f"s_lshl_b32 s{sSTLD}, s{sT4}, 8")
        P(f"s_add_u32 s{sSTLD}, s{sSTLD}, {ST_OFF}")
        P(f"s_lshl_b32 s{sFINST}, s{sT4}, 5")
        P(f"s_lshl_b32 s{sT4}, s{sW}, 11")
        P(f"s_add_u32 s{sOPLD}, s{sOPLD}, s{sT4}")
        P(f"s_add_u32 s{sOPLD}, s{sOPLD}, {OP_OFF}")
        P(f"s_lshl_b32 s{sT4}, s{sT2}, 15")
        P(f"s_add_u32 s{sFINST}, s{sFINST}, s{sT4}")
        P(f"s_add_u32 s{sFINST}, s{sFINST}, {FIN_OFF}")
        P(f"s_add_u32 s{sT4}, s{sT3}, s{sW}")
        P(f"s_lshl_b32 s{sFINLD}, s{sT4}, 11")
        P(f"s_add_u32 s{sFINLD}, s{sFINLD}, {FIN_OFF}")
        P(f"s_mov_b32 s{sMASK}, 0xffffff00")
        P(f"s_mov_b32 s{sLOG2E}, 0x3fb8aa3b")
        P(f"s_mov_b32 s{sSCL}, 0x3db504f3")
        P(f"s_mov_b32 s{sSCL+1}, 0x3db504f3")
        P(f"s_mov_b32 s{sHI}, 0xffff0000")
        P(f"s_mov_b32 s{sCNT}, 20000")
        P(f"v_mov_b32 {v(t0)}, s{sW}")
        P(f"v_and_b32 {v(t1)}, 1, {v(vL)}")
        P(f"v_lshlrev_b32 {v(t1)}, 4, {v(t1)}")
        P(f"s_mov_b32 s{sT3}, 0xffff")
        P(f"v_lshlrev_b32_e64 {v(t1)}, {v(t1)}, s{sT3}")
        P(f"v_bfe_u32 {v(t2)}, {v(vL)}, 1, 3")
        for k in range(4):
            P(f"v_cmp_eq_u32 vcc, {k}, {v(t2)}")
            P(f"v_cndmask_b32 {v(vM+k)}, 0, {v(t1)}, vcc")
        P(f"v_and_b32 {v(t1)}, 15, {v(vL)}")
        P(f"v_lshlrev_b32 {v(t1)}, 5, {v(t1)}")
        P(f"v_lshrrev_b32 {v(t2)}, 4, {v(vL)}")
        P(f"v_lshl_or_b32 {v(t1)}, {v(t2)}, 4, {v(t1)}")
        P(f"v_lshl_or_b32 {v(vQa)}, {v(t0)}, 9, {v(t1)}")
        P(f"v_and_b32 {v(t1)}, 31, {v(vL)}")
        P(f"v_lshlrev_b32 {v(t1)}, 3, {v(t1)}")
        P(f"v_lshrrev_b32 {v(t3)}, 5, {v(vL)}")
        P(f"v_lshl_or_b32 {v(t1)}, {v(t3)}, 1, {v(t1)}")
        P(f"s_mul_i32 s{sT3}, s{sW}, 272")
        P(f"s_add_u32 s{sT3}, s{sT3}, {L_QL}")
        P(f"v_add_u32 {v(vQw)}, s{sT3}, {v(t1)}")
        P(f"v_and_b32 {v(t1)}, 3, {v(vL)}")
        P(f"v_mul_u32_u24 {v(t3)}, 272, {v(t1)}")
        P(f"v_lshrrev_b32 {v(vQr)}, 2, {v(vL)}")
        P(f"v_lshl_add_u32 {v(vQr)}, {v(vQr)}, 4, {v(t3)}")
        P(f"v_add_u32 {v(vQr)}, {L_QL}, {v(vQr)}")
        P(f"v_lshlrev_b32 {v(vMx)}, 2, {v(t1)}")
        P(f"v_add_u32 {v(vMx)}, {L_MX}, {v(vMx)}")
        P(f"v_lshlrev_b32 {v(t3)}, 2, {v(t1)}")
        P(f"v_lshl_or_b32 {v(t3)}, {v(t2)}, 4, {v(t3)}")
        P(f"v_lshl_or_b32 {v(t3)}, {v(t0)}, 6, {v(t3)}")
        P(f"v_add_u32 {v(vLs)}, {L_LS}, {v(t3)}")
        P(f"v_mul_u32_u24 {v(t3)}, {ORED_H}, {v(t1)}")
        P(f"v_lshl_add_u32 {v(t3)}, {v(t2)}, 7, {v(t3)}")
        P(f"v_bfe_u32 {v(t1)}, {v(vL)}, 2, 2")
        P(f"v_lshl_add_u32 {v(t3)}, {v(t1)}, 3, {v(t3)}")
        P(f"s_mul_i32 s{sT3}, s{sW}, {ORED_W}")
        P(f"s_add_u32 s{sT3}, s{sT3}, {L_ORED}")
        P(f"v_add_u32 {v(vOw)}, s{sT3}, {v(t3)}")
        P(f"s_mul_i32 s{sT3}, s{sW}, {ORED_H}")
        P(f"s_add_u32 s{sT3}, s{sT3}, {L_ORED}")
        P(f"v_add_u32 {v(vOr)}, s{sT3}, {v(vL16)}")
        P(f"v_and_b32 {v(t1)}, 1, {v(t2)}")
        P(f"v_lshlrev_b32 {v(t1)}, 1, {v(t1)}")
        P(f"v_lshrrev_b32 {v(t3)}, 1, {v(t2)}")
        P(f"v_or_b32 {v(t1)}, {v(t1)}, {v(t3)}")
        P(f"v_and_b32 {v(t3)}, 15, {v(vL)}")
        P(f"v_lshlrev_b32 {v(t3)}, 4, {v(t3)}")
        P(f"v_lshl_or_b32 {v(t3)}, {v(t1)}, 10, {v(t3)}")
        P(f"v_lshl_or_b32 {v(vWo)}, {v(t0)}, 15, {v(t3)}")
        P(f"v_mov_b32 {v(t1)}, 0xff800000")
        P(f"ds_write_b32 {v(vMx)}, {v(t1)}")
        self.stamp("setup")
        P("s_waitcnt vmcnt(32)")
        P(f"v_lshl_or_b32 {v(vT+8)}, {v(vT+8)}, 16, {v(vT+8)}")
        for t in range(8):
            for k in range(4):
                P(f"v_and_b32_dpp {v(X+4*t+k)}, {v(vT+8)}, {v(vM+k)} row_newbcast:{t} row_mask:0xf bank_mask:0xf")
        D = vT + 4
        for t in range(8):
            P(f"s_waitcnt vmcnt({24+7-t})")
            P(f"v_mfma_f32_16x16x32_bf16 {v(D,4)}, {v(X+4*t,4)}, {v(W+4*t,4)}, {'0' if t==0 else v(D,4)}")
        self.stamp("wq_done")
        P("s_mov_b32 exec_hi, 0")
        P(f"ds_write_b128 {v(vQa)}, {v(D,4)} offset:{L_QRED}")
        P("s_mov_b32 exec_hi, -1")
        P("s_waitcnt lgkmcnt(0)")
        P("s_barrier")
        P(f"s_add_u32 s{sE}, s{sE}, 1")
        P(f"s_and_b32 s{sT3}, s{sE}, 0xff")
        P(f"v_mov_b32 {v(vTau)}, s{sT3}")
        P(f"s_cmp_lg_u32 s{sW}, 0")
        P("s_cbranch_scc1 L_QPUB_DONE")
        P("s_mov_b32 exec_hi, 0")
        for k in range(4):
            P(f"ds_read_b128 {v(X+4*k,4)}, {v(vL16)} offset:{L_QRED+512*k}")
        P("s_waitcnt lgkmcnt(0)")
        self.sum4(X)
        for k in range(4):
            P(f"v_and_or_b32 {v(X+k)}, {v(X+k)}, s{sMASK}, {v(vTau)}")
        P(f"buffer_store_dwordx4 {v(X,4)}, {v(vL16)}, {srd(S_WS)}, s{sQPST} offen sc1")
        P("s_mov_b32 exec_hi, -1")
        P.label("L_QPUB_DONE")
        P("s_nop 1")
        self.stamp("q_pub")
        BS = X + 16
        for k in range(16):
            P(f"v_mov_b32 {v(BS+k)}, 0")
        P(f"s_cmp_lg_u32 s{sS}, 0")
        P("s_cbranch_scc1 L_GATE_DONE")
        self.gate()
        P.label("L_GATE_DONE")
        P("s_waitcnt vmcnt(9)")
        self.stamp("k_done")
        GQ = X + 32
        P(f"buffer_load_dwordx4 {v(GQ,4)}, {v(vV)}, {srd(S_WS)}, s{sQPLD} offen sc1")
        P(f"buffer_load_dwordx4 {v(GQ+4,4)}, {v(vV)}, {srd(S_WS)}, s{sQPLD} offen offset:1024 sc1")
        for n in range(8, 16):
            P(f"buffer_load_dwordx4 {v(V+4*n,4)}, {v(vV)}, {srd(S_V)}, {soff(16384*(n>>2))} offen offset:{1024*(n&3)}{nt}")
        for u in range(8):
            P(f"buffer_load_dwordx4 {v(W+4*u,4)}, {v(vWo)}, {srd(S_WO)}, {soff(4096*u)} offen{nt}")
        P("s_waitcnt vmcnt(16)")
        P.label("L_QCHK")
        self.tagcheck(list(range(GQ, GQ+8)), vT)
        P("s_cbranch_vccz L_QOK")
        P(f"s_sub_u32 s{sCNT}, s{sCNT}, 1")
        P("s_cbranch_scc1 L_QOK")
        P(f"buffer_load_dwordx4 {v(GQ,4)}, {v(vV)}, {srd(S_WS)}, s{sQPLD} offen sc1")
        P(f"buffer_load_dwordx4 {v(GQ+4,4)}, {v(vV)}, {srd(S_WS)}, s{sQPLD} offen offset:1024 sc1")
        P("s_waitcnt vmcnt(0)")
        P("s_branch L_QCHK")
        P.label("L_QOK")
        self.stamp("q_got")
        for k in range(8):
            P(f"v_and_b32 {v(GQ+k)}, s{sMASK}, {v(GQ+k)}")
        P(f"v_pk_add_f32 {v(GQ,2)}, {v(GQ,2)}, {v(GQ+4,2)}")
        P(f"v_pk_add_f32 {v(GQ+2,2)}, {v(GQ+2,2)}, {v(GQ+6,2)}")
        P(f"v_permlane32_swap_b32 {v(GQ)}, {v(GQ+1)}")
        P(f"v_permlane32_swap_b32 {v(GQ+2)}, {v(GQ+3)}")
        P(f"v_add_f32 {v(GQ)}, {v(GQ)}, {v(GQ+1)}")
        P(f"v_add_f32 {v(GQ+2)}, {v(GQ+2)}, {v(GQ+3)}")
        P(f"v_cvt_pk_bf16_f32 {v(GQ)}, {v(GQ)}, {v(GQ+2)}")
        P(f"ds_write_b16 {v(vQw)}, {v(GQ)}")
        P(f"ds_write_b16_d16_hi {v(vQw)}, {v(GQ)} offset:4")
        P("s_waitcnt lgkmcnt(0)")
        P("s_barrier")
        BQ = vT + 4
        P(f"ds_read_b128 {v(BQ,4)}, {v(vQr)}")
        P("s_waitcnt lgkmcnt(0)")
        DS = X
        S = X + 32
        def mf(n): P(f"v_mfma_f32_16x16x32_bf16 {v(DS+4*(n&3),4)}, {v(K+4*n,4)}, {v(BQ,4)}, 0")
        def fold(n):
            g, u = n >> 2, n & 3
            for b in range(4):
                src = DS + 4*(n&3) + b
                if b == 0:
                    P(f"v_mov_b32_dpp {v(S+g)}, {v(src)} {ror(4*(u-b))} row_mask:0xf bank_mask:{1<<u:#x}")
                else:
                    P(f"v_add_f32_dpp {v(S+g)}, {v(src)}, {v(S+g)} {ror(4*(u-b))} row_mask:0xf bank_mask:{1<<u:#x}")
        mf(0); mf(1); mf(2)
        for n in range(16):
            fold(n)
            if n + 3 < 16: mf(n + 3)
        self.stamp("qk_done")
        R = X + 36
        def rnd():
            P(f"v_cvt_pk_bf16_f32 {v(R)}, {v(S)}, {v(S+1)}")
            P(f"v_cvt_pk_bf16_f32 {v(R+1)}, {v(S+2)}, {v(S+3)}")
            P(f"v_lshlrev_b32 {v(S)}, 16, {v(R)}")
            P(f"v_and_b32 {v(S+1)}, s{sHI}, {v(R)}")
            P(f"v_lshlrev_b32 {v(S+2)}, 16, {v(R+1)}")
            P(f"v_and_b32 {v(S+3)}, s{sHI}, {v(R+1)}")
        rnd()
        P(f"v_pk_mul_f32 {v(S,2)}, {v(S,2)}, s[{sSCL}:{sSCL+1}]")
        P(f"v_pk_mul_f32 {v(S+2,2)}, {v(S+2,2)}, s[{sSCL}:{sSCL+1}]")
        rnd()
        Mx = X + 38
        P(f"v_max3_f32 {v(Mx)}, {v(S)}, {v(S+1)}, {v(S+2)}")
        P(f"v_max_f32 {v(Mx)}, {v(Mx)}, {v(S+3)}")
        P(f"v_max_f32_dpp {v(Mx)}, {v(Mx)}, {v(Mx)} row_ror:4 row_mask:0xf bank_mask:0xf")
        P(f"v_max_f32_dpp {v(Mx)}, {v(Mx)}, {v(Mx)} row_ror:8 row_mask:0xf bank_mask:0xf")
        P(f"ds_max_f32 {v(vMx)}, {v(Mx)}")
        P("s_waitcnt lgkmcnt(0)")
        P("s_barrier")
        P(f"ds_read_b32 {v(Mx)}, {v(vMx)}")
        P("s_waitcnt lgkmcnt(0)")
        P(f"v_mul_f32 {v(Mx+1)}, s{sLOG2E}, {v(Mx)}")
        for g in range(4):
            P(f"v_fma_f32 {v(S+g)}, {v(S+g)}, s{sLOG2E}, -{v(Mx+1)}")
        for g in range(4):
            P(f"v_exp_f32 {v(S+g)}, {v(S+g)}")
        PL = X + 40; PH = X + 44
        for g in range(4):
            P(f"v_cvt_pk_bf16_f32 {v(PL+g)}, {v(S+g)}, 0")
            P(f"v_cvt_pk_bf16_f32 {v(PH+g)}, 0, {v(S+g)}")
        P(f"v_pk_add_f32 {v(S,2)}, {v(S,2)}, {v(S+2,2)}")
        P(f"v_add_f32 {v(S)}, {v(S)}, {v(S+1)}")
        P(f"v_add_f32_dpp {v(S)}, {v(S)}, {v(S)} row_ror:4 row_mask:0xf bank_mask:0xf")
        P(f"v_add_f32_dpp {v(S)}, {v(S)}, {v(S)} row_ror:8 row_mask:0xf bank_mask:0xf")
        P(f"ds_write_b32 {v(vLs)}, {v(S)}")
        self.stamp("sm_done")
        ACC = X + 48
        for n in range(16):
            g, u0 = n >> 2, n & 3
            for m in range(2):
                bs = BS + 4 * ((2*n + m) & 3)
                src = (PL if m == 0 else PH) + g
                for u in range(4):
                    P(f"v_mov_b32_dpp {v(bs+u)}, {v(src)} {ror(4*(u-u0))} row_mask:0xf bank_mask:{1<<u:#x}")
                if m == 0 and n >= 8:
                    P(f"s_waitcnt vmcnt({8+15-n})")
                P(f"v_mfma_f32_16x16x32_bf16 {v(ACC+4*m,4)}, {v(V+4*n,4)}, {v(bs,4)}, {'0' if n==0 else v(ACC+4*m,4)}")
        self.stamp("pv_done")
        for r in range(4):
            P(f"ds_write2_b32 {v(vOw)}, {v(ACC+r)}, {v(ACC+4+r)} offset0:{8*r} offset1:{8*r+1}")
        P("s_waitcnt lgkmcnt(0)")
        P("s_barrier")
        O = X
        P(f"s_lshl_b32 s{sT3}, s{sW}, 2")
        P(f"v_and_b32 {v(vT)}, 15, {v(vL)}")
        P(f"v_lshlrev_b32 {v(vT)}, 4, {v(vT)}")
        P(f"v_add_u32 {v(vT)}, s{sT3}, {v(vT)}")
        P(f"v_mov_b32 {v(vT+1)}, s{sT3}")
        P(f"ds_read_b32 {v(vT+2)}, {v(vT)} offset:{L_LS}")
        P(f"ds_read_b32 {v(O+16)}, {v(vT+1)} offset:{L_MX}")
        P("s_mov_b32 exec_hi, 0")
        for k in range(4):
            P(f"ds_read_b128 {v(O+4*k,4)}, {v(vOr)} offset:{ORED_W*k}")
        P(f"v_lshrrev_b32 {v(vT+3)}, 3, {v(vL)}")
        P(f"v_lshlrev_b32 {v(vT+3)}, 11, {v(vT+3)}")
        P(f"v_and_b32 {v(vT+4)}, 7, {v(vL)}")
        P(f"v_lshl_or_b32 {v(vT+3)}, {v(vT+4)}, 4, {v(vT+3)}")
        P("s_waitcnt lgkmcnt(0)")
        self.sum4(O)
        for k in range(4):
            P(f"v_and_or_b32 {v(O+k)}, {v(O+k)}, s{sMASK}, {v(vTau)}")
        P(f"buffer_store_dwordx4 {v(O,4)}, {v(vT+3)}, {srd(S_WS)}, s{sOPST} offen sc1")
        for n in (8, 4, 2, 1):
            P(f"v_add_f32_dpp {v(vT+2)}, {v(vT+2)}, {v(vT+2)} row_ror:{n} row_mask:0xf bank_mask:0xf")
        P(f"v_and_or_b32 {v(O+16)}, {v(O+16)}, s{sMASK}, {v(vTau)}")
        P(f"v_and_or_b32 {v(O+17)}, {v(vT+2)}, s{sMASK}, {v(vTau)}")
        P(f"v_mov_b32 {v(O+18)}, {v(vTau)}")
        P(f"v_mov_b32 {v(O+19)}, {v(vTau)}")
        P(f"v_mov_b32 {v(vT+4)}, 0")
        P("s_mov_b32 exec_lo, 1")
        P(f"buffer_store_dwordx4 {v(O+16,4)}, {v(vT+4)}, {srd(S_WS)}, s{sSTST} offen sc1")
        P("s_mov_b64 exec, -1")
        self.stamp("o_pub")
        GO = X + 32
        GS = X + 40
        P(f"v_lshrrev_b32 {v(vT+5)}, 3, {v(vL)}")
        P(f"v_lshlrev_b32 {v(vT+5)}, 4, {v(vT+5)}")
        P.label("L_OG")
        P(f"buffer_load_dwordx4 {v(GS,4)}, {v(vT+5)}, {srd(S_WS)}, s{sSTLD} offen sc1")
        P(f"buffer_load_dwordx4 {v(GS+4,4)}, {v(vT+5)}, {srd(S_WS)}, s{sSTLD} offen offset:128 sc1")
        P(f"buffer_load_dwordx4 {v(GO,4)}, {v(vL16)}, {srd(S_WS)}, s{sOPLD} offen sc1")
        P(f"buffer_load_dwordx4 {v(GO+4,4)}, {v(vL16)}, {srd(S_WS)}, s{sOPLD} offen offset:1024 sc1")
        P("s_waitcnt vmcnt(0)")
        self.tagcheck(list(range(GO, GO+16)), vT)
        P("s_cbranch_vccz L_OOK")
        P(f"s_sub_u32 s{sCNT}, s{sCNT}, 1")
        P("s_cbranch_scc0 L_OG")
        P.label("L_OOK")
        self.stamp("o_got")
        for r in (GS, GS+1, GS+4, GS+5):
            P(f"v_and_b32 {v(r)}, s{sMASK}, {v(r)}")
        for k in range(8):
            P(f"v_and_b32 {v(GO+k)}, s{sMASK}, {v(GO+k)}")
        a, b_ = vT, vT+1
        P(f"v_max_f32 {v(a)}, {v(GS)}, {v(GS+4)}")
        P(f"v_max_f32_dpp {v(a)}, {v(a)}, {v(a)} row_ror:8 row_mask:0xf bank_mask:0xf")
        P(f"v_mov_b32 {v(b_)}, {v(a)}")
        P(f"v_permlane16_swap_b32 {v(a)}, {v(b_)}")
        P(f"v_max_f32 {v(a)}, {v(a)}, {v(b_)}")
        P(f"v_mov_b32 {v(b_)}, {v(a)}")
        P(f"v_permlane32_swap_b32 {v(a)}, {v(b_)}")
        P(f"v_max_f32 {v(a)}, {v(a)}, {v(b_)}")
        P(f"v_mul_f32 {v(a)}, s{sLOG2E}, {v(a)}")
        P(f"v_fma_f32 {v(GS)}, {v(GS)}, s{sLOG2E}, -{v(a)}")
        P(f"v_fma_f32 {v(GS+4)}, {v(GS+4)}, s{sLOG2E}, -{v(a)}")
        P(f"v_exp_f32 {v(GS)}, {v(GS)}")
        P(f"v_exp_f32 {v(GS+4)}, {v(GS+4)}")
        P(f"v_mul_f32 {v(a)}, {v(GS)}, {v(GS+1)}")
        P(f"v_fma_f32 {v(a)}, {v(GS+4)}, {v(GS+5)}, {v(a)}")
        for k in range(4):
            P(f"v_mul_f32 {v(GO+k)}, {v(GS)}, {v(GO+k)}")
        for k in range(4):
            P(f"v_fma_f32 {v(GO+k)}, {v(GS+4)}, {v(GO+4+k)}, {v(GO+k)}")
        P(f"v_add_f32_dpp {v(a)}, {v(a)}, {v(a)} row_ror:8 row_mask:0xf bank_mask:0xf")
        P(f"v_permlane32_swap_b32 {v(GO)}, {v(GO+1)}")
        P(f"v_permlane32_swap_b32 {v(GO+2)}, {v(GO+3)}")
        P(f"v_mov_b32 {v(b_)}, {v(a)}")
        P(f"v_add_f32 {v(GO)}, {v(GO)}, {v(GO+1)}")
        P(f"v_add_f32 {v(GO+2)}, {v(GO+2)}, {v(GO+3)}")
        P(f"v_permlane16_swap_b32 {v(a)}, {v(b_)}")
        P(f"v_add_f32 {v(a)}, {v(a)}, {v(b_)}")
        P(f"v_permlane16_swap_b32 {v(GO)}, {v(GO+2)}")
        P(f"v_mov_b32 {v(b_)}, {v(a)}")
        P(f"v_add_f32 {v(GO)}, {v(GO)}, {v(GO+2)}")
        P(f"v_permlane32_swap_b32 {v(a)}, {v(b_)}")
        P(f"v_add_f32 {v(a)}, {v(a)}, {v(b_)}")
        P(f"v_add_f32_dpp {v(GO)}, {v(GO)}, {v(GO)} row_ror:8 row_mask:0xf bank_mask:0xf")
        P(f"v_rcp_f32 {v(a)}, {v(a)}")
        P(f"v_mul_f32 {v(GO)}, {v(GO)}, {v(a)}")
        P(f"v_cvt_pk_bf16_f32 {v(GO)}, {v(GO)}, {v(GO)}")
        SEL = X
        D2 = vT + 4
        for u in range(8):
            for k in range(4):
                P(f"v_and_b32_dpp {v(SEL+4*u+k)}, {v(GO)}, {v(vM+k)} row_newbcast:{u} row_mask:0xf bank_mask:0xf")
            if u >= 1:
                P(f"v_mfma_f32_16x16x32_bf16 {v(D2,4)}, {v(SEL+4*(u-1),4)}, {v(W+4*(u-1),4)}, {'0' if u==1 else v(D2,4)}")
        P(f"v_mfma_f32_16x16x32_bf16 {v(D2,4)}, {v(SEL+28,4)}, {v(W+28,4)}, {v(D2,4)}")
        P("s_mov_b32 exec_hi, 0")
        P(f"ds_write_b128 {v(vQa)}, {v(D2,4)} offset:{L_QRED}")
        P("s_mov_b32 exec_hi, -1")
        P("s_waitcnt lgkmcnt(0)")
        P("s_barrier")
        self.stamp("wo_done")
        P(f"s_cmp_lg_u32 s{sW}, 0")
        P("s_cbranch_scc1 L_APUB_DONE")
        P("s_mov_b32 exec_hi, 0")
        for k in range(4):
            P(f"ds_read_b128 {v(X+4*k,4)}, {v(vL16)} offset:{L_QRED+512*k}")
        P(f"v_lshrrev_b32 {v(vT)}, 1, {v(vL)}")
        P(f"v_lshlrev_b32 {v(vT)}, 11, {v(vT)}")
        P(f"v_and_b32 {v(vT+1)}, 1, {v(vL)}")
        P(f"v_lshl_or_b32 {v(vT)}, {v(vT+1)}, 4, {v(vT)}")
        P("s_waitcnt lgkmcnt(0)")
        self.sum4(X)
        for k in range(4):
            P(f"v_and_or_b32 {v(X+k)}, {v(X+k)}, s{sMASK}, {v(vTau)}")
        P(f"buffer_store_dwordx4 {v(X,4)}, {v(vT)}, {srd(S_WS)}, s{sFINST} offen sc1")
        P("s_mov_b32 exec_hi, -1")
        P.label("L_APUB_DONE")
        P("s_nop 1")
        self.stamp("a_pub")
        P(f"s_cmp_lg_u32 s{sS}, 0")
        P("s_cbranch_scc1 L_FIN_DONE")
        F = X + 32
        P.label("L_FG")
        P(f"buffer_load_dwordx4 {v(F,4)}, {v(vL16)}, {srd(S_WS)}, s{sFINLD} offen sc1")
        P(f"buffer_load_dwordx4 {v(F+4,4)}, {v(vL16)}, {srd(S_WS)}, s{sFINLD} offen offset:1024 sc1")
        P("s_waitcnt vmcnt(0)")
        self.tagcheck(list(range(F, F+8)), vT)
        P("s_cbranch_vccz L_FOK")
        P(f"s_sub_u32 s{sCNT}, s{sCNT}, 1")
        P("s_cbranch_scc0 L_FG")
        P.label("L_FOK")
        self.stamp("f_got")
        for k in range(8):
            P(f"v_and_b32 {v(F+k)}, s{sMASK}, {v(F+k)}")
        for k in range(4):
            P(f"v_permlane32_swap_b32 {v(F+k)}, {v(F+4+k)}")
        P(f"v_pk_add_f32 {v(F,2)}, {v(F,2)}, {v(F+4,2)}")
        P(f"v_pk_add_f32 {v(F+2,2)}, {v(F+2,2)}, {v(F+6,2)}")
        P(f"v_permlane16_swap_b32 {v(F)}, {v(F+1)}")
        P(f"v_permlane16_swap_b32 {v(F+2)}, {v(F+3)}")
        P(f"v_add_f32 {v(F)}, {v(F)}, {v(F+1)}")
        P(f"v_add_f32 {v(F+1)}, {v(F+2)}, {v(F+3)}")
        for n in (8, 4, 2):
            P(f"v_add_f32_dpp {v(F)}, {v(F)}, {v(F)} row_ror:{n} row_mask:0xf bank_mask:0xf")
            P(f"v_add_f32_dpp {v(F+1)}, {v(F+1)}, {v(F+1)} row_ror:{n} row_mask:0xf bank_mask:0xf")
        P(f"v_cvt_pk_bf16_f32 {v(F+2)}, {v(F)}, {v(F+1)}")
        P(f"v_lshlrev_b32 {v(F)}, 16, {v(F+2)}")
        P(f"v_and_b32 {v(F+1)}, s{sHI}, {v(F+2)}")
        P(f"v_mul_f32 {v(F)}, {v(vCoef)}, {v(F)}")
        P(f"v_mul_f32 {v(F+1)}, {v(vCoef)}, {v(F+1)}")
        P(f"v_cvt_pk_bf16_f32 {v(F+2)}, {v(F)}, {v(F+1)}")
        P(f"v_lshlrev_b32 {v(F)}, 16, {v(F+2)}")
        P(f"v_and_b32 {v(F+1)}, s{sHI}, {v(F+2)}")
        P(f"v_permlane32_swap_b32 {v(F)}, {v(F+1)}")
        P(f"v_add_f32 {v(F)}, {v(F)}, {v(F+1)}")
        P(f"v_cvt_pk_bf16_f32 {v(F)}, {v(F)}, {v(F)}")
        P(f"v_and_b32 {v(vT)}, 1, {v(vL)}")
        P(f"v_lshlrev_b32 {v(vT)}, 3, {v(vT)}")
        P(f"v_lshrrev_b32 {v(vT+1)}, 4, {v(vL)}")
        P(f"v_lshl_or_b32 {v(vT)}, {v(vT+1)}, 1, {v(vT)}")
        P(f"s_lshl_b32 s{sT3}, s{sP}, 2")
        P(f"s_add_u32 s{sT3}, s{sT3}, s{sW}")
        P(f"s_lshl_b32 s{sT3}, s{sT3}, 4")
        P("s_mov_b32 exec_lo, 0x00030003")
        P("s_mov_b32 exec_hi, 0x00030003")
        P(f"buffer_store_short {v(F)}, {v(vT)}, {srd(S_OUT)}, s{sT3} offen")
        P(f"v_mov_b32 {v(vT+2)}, s{sE}")
        P(f"v_mov_b32 {v(vT+3)}, 0")
        P("s_mov_b64 exec, 1")
        P(f"buffer_store_dword {v(vT+2)}, {v(vT+3)}, {srd(S_WS)}, 0 offen sc1")
        P("s_mov_b64 exec, -1")
        P.label("L_FIN_DONE")
        self.stamp("end")
        if self.prof:
            P("s_waitcnt lgkmcnt(0)")
            P(f"s_lshl_b32 s{sT3}, s2, 2")
            P(f"s_add_u32 s{sT3}, s{sT3}, s{sW}")
            P(f"s_lshl_b32 s{sT3}, s{sT3}, 6")
            P(f"s_add_u32 s{sT3}, s{sT3}, {PROF_OFF}")
            P(f"v_mov_b32 {v(X)}, s100")
            for i in range(15):
                P(f"v_mov_b32 {v(X+1+i)}, " + (f"s{4+2*i}" if i < self.nst else f"s{sCNT}"))
            P(f"v_mov_b32 {v(vT)}, 0")
            P("s_mov_b64 exec, 1")
            for k in range(4):
                P(f"buffer_store_dwordx4 {v(X+4*k,4)}, {v(vT)}, {srd(S_WS)}, s{sT3} offen offset:{16*k}")
        P.label("L_END")
        P("s_endpgm")

    def sum4(self, B):
        P = self.P
        P(f"v_pk_add_f32 {v(B,2)}, {v(B,2)}, {v(B+4,2)}")
        P(f"v_pk_add_f32 {v(B+2,2)}, {v(B+2,2)}, {v(B+6,2)}")
        P(f"v_pk_add_f32 {v(B+8,2)}, {v(B+8,2)}, {v(B+12,2)}")
        P(f"v_pk_add_f32 {v(B+10,2)}, {v(B+10,2)}, {v(B+14,2)}")
        P(f"v_pk_add_f32 {v(B,2)}, {v(B,2)}, {v(B+8,2)}")
        P(f"v_pk_add_f32 {v(B+2,2)}, {v(B+2,2)}, {v(B+10,2)}")

    def gate(self):
        P = self.P
        A = V + 32; B = V + 36; T = V + 40
        acc = T + 6
        P(f"v_mov_b32 {v(acc)}, 0")
        P(f"s_mov_b32 s{sT3}, 0x3f803f80")
        for k in range(4):
            P(f"v_lshlrev_b32 {v(T)}, 16, {v(A+k)}")
            P(f"v_and_b32 {v(T+1)}, s{sHI}, {v(A+k)}")
            P(f"v_lshlrev_b32 {v(T+2)}, 16, {v(B+k)}")
            P(f"v_and_b32 {v(T+3)}, s{sHI}, {v(B+k)}")
            P(f"v_pk_mul_f32 {v(T,2)}, {v(T,2)}, {v(T+2,2)}")
            P(f"v_cvt_pk_bf16_f32 {v(T+4)}, {v(T)}, {v(T+1)}")
            P(f"v_lshlrev_b32 {v(T)}, 16, {v(T+4)}")
            P(f"v_and_b32 {v(T+1)}, s{sHI}, {v(T+4)}")
            P(f"v_add_f32 {v(acc)}, {v(acc)}, {v(T)}")
            P(f"v_add_f32 {v(acc)}, {v(acc)}, {v(T+1)}")
        for n in (8, 4, 2, 1):
            P(f"v_add_f32_dpp {v(acc)}, {v(acc)}, {v(acc)} row_ror:{n} row_mask:0xf bank_mask:0xf")
        P(f"v_mov_b32 {v(T)}, {v(acc)}")
        P(f"v_permlane16_swap_b32 {v(acc)}, {v(T)}")
        P(f"v_add_f32 {v(acc)}, {v(acc)}, {v(T)}")
        P(f"v_mov_b32 {v(T)}, {v(acc)}")
        P(f"v_permlane32_swap_b32 {v(acc)}, {v(T)}")
        P(f"v_add_f32 {v(acc)}, {v(acc)}, {v(T)}")
        P(f"v_cvt_pk_bf16_f32 {v(acc)}, {v(acc)}, {v(acc)}")
        P(f"v_and_b32 {v(acc)}, s{sHI}, {v(acc)}")
        P(f"v_mul_f32 {v(acc)}, s{sLOG2E}, {v(acc)}")
        P(f"v_exp_f32_e64 {v(acc)}, -{v(acc)}")
        P(f"v_add_f32 {v(acc)}, 1.0, {v(acc)}")
        P(f"v_rcp_f32 {v(acc)}, {v(acc)}")
        P(f"v_cvt_pk_bf16_f32 {v(acc)}, {v(acc)}, {v(acc)}")
        P(f"v_and_b32 {v(acc)}, s{sHI}, {v(acc)}")
        P(f"v_sub_f32 {v(T)}, 1.0, {v(acc)}")
        P(f"v_cvt_pk_bf16_f32 {v(T)}, {v(T)}, {v(T)}")
        P(f"v_and_b32 {v(T)}, s{sHI}, {v(T)}")
        P(f"v_cmp_lt_u32 vcc, 31, {v(vL)}")
        P(f"v_cndmask_b32 {v(vCoef)}, {v(acc)}, {v(T)}, vcc")

def build(prof=False, nt=False, opts=None):
    g = G(prof, nt, opts)
    g.gen()
    body = g.P.finish(verbose=True)
    hdr = open("gated_mix__sliding_block_cached__sliding_block_cached__decode.s.ref").read().split("\n")
    top = []
    for ln in hdr:
        if ln.startswith("; @launch"):
            top.append(f"; @launch grid=(256,1,1) block=(256,1,1) lds={LDS_BYTES}")
        elif ln.startswith(KNAME + ":"):
            top.append(ln); break
        else:
            top.append(ln)
    tail = f"""
.section .rodata,"a"
.p2align 6
.amdhsa_kernel {KNAME}
  .amdhsa_next_free_vgpr 256
  .amdhsa_next_free_sgpr 102
  .amdhsa_accum_offset 256
  .amdhsa_group_segment_fixed_size 0
  .amdhsa_kernarg_size 112
  .amdhsa_user_sgpr_count 2
  .amdhsa_user_sgpr_kernarg_segment_ptr 1
  .amdhsa_system_sgpr_workgroup_id_x 1
.end_amdhsa_kernel
"""
    return "\n".join(top) + "\n" + body + tail, g.stnames

if __name__ == "__main__":
    ap = argparse.ArgumentParser()
    ap.add_argument("-o", default="gated_mix__sliding_block_cached__sliding_block_cached__decode.s")
    ap.add_argument("--prof", action="store_true")
    ap.add_argument("--nt", action="store_true")
    a = ap.parse_args()
    txt, names = build(a.prof, a.nt)
    open(a.o, "w").write(txt)
    print("stamps:", names)
```

```python
import sys, argparse
sys.path.insert(0, "gen")
from asmlib import Prog

KNAME = "gated_mix__sliding_block_cached__sliding_block_cached__decode_kernel"

QP_OFF = 0x10000; OP_OFF = 0x50000; ST_OFF = 0xD0000; FIN_OFF = 0xE0000; PROF_OFF = 0x140000
WS_REC = 0x200000
L_QRED = 0
L_QL = 4096; L_MX = 5248; L_ORED = 5376
ORED_H = 544; ORED_W = 4 * ORED_H
LDS_BYTES = L_ORED + 4 * ORED_W

S_WQ, S_K, S_V, S_X, S_WS, S_WO, S_G, S_OUT = 32, 36, 40, 44, 48, 52, 56, 60
def srd(b): return f"s[{b}:{b+3}]"
CONST = {4096: 64, 8192: 65, 12288: 66, 16384: 67, 24576: 69, 32768: 71, 40960: 72, 49152: 73, 57344: 74}
def soff(x): return "0" if x == 0 else f"s{CONST[x]}"
sP, sS, sW, sE, sMASK, sLOG2E = 75, 76, 77, 78, 79, 80
sSCL = 82
sCNT = 84; sT0 = 85; sT1 = 86; sT2 = 87
sQPST, sQPLD, sOPST, sOPLD, sSTST, sSTLD, sFINST, sFINLD, sXOFF = 88, 89, 90, 91, 92, 93, 94, 95, 96
sHI = 97
sT3 = 98; sT4 = 99
sR = 81
sSRC = 68

vL, vWq, vK, vV, vTau, vXs, vWo = 1, 2, 3, 4, 5, 6, 7
vM = 8
vQa, vQw, vQr, vMx, vOw, vOr = 12, 13, 14, 15, 17, 18
vL16 = 19
vT = 20
vM2 = 28
W = 32; K = 64; V = 128; X = 192
GX = X + 56
vCA = X + 56; vCB = X + 58

def v(i, n=1): return f"v{i}" if n == 1 else f"v[{i}:{i+n-1}]"

def ror(n):
    n &= 15
    return "quad_perm:[0,1,2,3]" if n == 0 else f"row_ror:{n}"

class G:
    def __init__(self, prof=False, nt=True, opts=None):
        self.P = Prog(); self.prof = prof; self.nst = 0
        self.nt = " nt" if nt else ""
        self.o = opts or {}

    def stamp(self, name):
        if not self.prof: return
        i = self.nst; self.nst += 1
        assert i < 14
        self.P(f"s_memrealtime s[{4+2*i}:{5+2*i}]")
        self.stnames.append(name)

    def snap(self, i):
        if self.prof: self.P(f"s_mov_b32 s{56+i}, s{sCNT}")

    def tagcheck(self, regs, acc):
        P = self.P
        for r in regs:
            P(f"v_xor_b32 {v(r)}, {v(r)}, {v(vTau)}")
        rs = list(regs)
        P(f"v_or3_b32 {v(acc)}, {v(rs[0])}, {v(rs[1])}, {v(rs[2])}")
        rs = rs[3:]
        while rs:
            if len(rs) >= 2:
                P(f"v_or3_b32 {v(acc)}, {v(acc)}, {v(rs[0])}, {v(rs[1])}"); rs = rs[2:]
            else:
                P(f"v_or_b32 {v(acc)}, {v(acc)}, {v(rs[0])}"); rs = rs[1:]
        P(f"v_cmp_ne_u32_sdwa vcc, {v(acc)}, 0 src0_sel:BYTE_0 src1_sel:DWORD")

    def gen(self):
        P = self.P; nt = self.nt; o = self.o
        self.stnames = []
        NRED = 32
        P(f"s_cmp_ge_u32 s2, 256")
        P(f"s_cbranch_scc1 L_END")
        P("s_load_dwordx16 s[4:19], s[0:1], 0")
        P("s_load_dwordx8 s[20:27], s[0:1], 64")
        P("s_load_dwordx4 s[28:31], s[0:1], 96")
        if self.prof:
            P("s_memrealtime s[100:101]")
        t0, t1, t2, t3 = vT, vT+1, vT+2, vT+3
        P(f"v_and_b32 {v(vL)}, 63, v0")
        P(f"v_lshrrev_b32 {v(t0)}, 4, v0")
        P(f"v_and_b32 {v(t1)}, 15, v0")
        P(f"v_lshlrev_b32 {v(t1)}, 4, {v(t1)}")
        P(f"v_lshl_or_b32 {v(vWq)}, {v(t0)}, 16, {v(t1)}")
        P(f"v_and_b32 {v(t2)}, 7, v0")
        P(f"v_lshlrev_b32 {v(t2)}, 1, {v(t2)}")
        P(f"v_lshl_or_b32 {v(vXs)}, {v(t0)}, 4, {v(t2)}")
        P(f"v_lshlrev_b32 {v(vL16)}, 4, {v(vL)}")
        P(f"v_lshrrev_b32 {v(t0)}, 6, v0")
        P(f"v_lshl_or_b32 {v(vV)}, {v(t0)}, 12, {v(vL16)}")
        P(f"v_and_b32 {v(t2)}, 3, {v(vL)}")
        P(f"v_lshlrev_b32 {v(t2)}, 4, {v(t2)}")
        P(f"v_bfe_u32 {v(t3)}, {v(vL)}, 2, 2")
        P(f"v_lshl_or_b32 {v(t2)}, {v(t3)}, 8, {v(t2)}")
        P(f"v_lshrrev_b32 {v(t3)}, 4, {v(vL)}")
        P(f"v_lshl_or_b32 {v(t2)}, {v(t3)}, 6, {v(t2)}")
        P(f"v_lshl_or_b32 {v(vK)}, {v(t0)}, 12, {v(t2)}")
        P(f"v_readfirstlane_b32 s{sW}, {v(t0)}")
        P(f"s_and_b32 s{sP}, s2, 15")
        P(f"s_lshr_b32 s{sS}, s2, 4")
        P(f"s_and_b32 s{sT0}, s2, 7")
        P(f"s_lshr_b32 s{sT1}, s2, 6")
        P(f"s_and_b32 s{sT2}, s{sS}, 3")
        P(f"s_lshl_b32 s{sT3}, s{sT0}, 2")
        P(f"s_add_u32 s{sT3}, s{sT3}, s{sT2}")
        P(f"s_lshl_b32 s{sT3}, s{sT3}, 8")
        P(f"s_lshl_b32 s{sT4}, s{sT1}, 20")
        P(f"s_add_u32 s{sT3}, s{sT3}, s{sT4}")
        P(f"s_lshl_b32 s{sT4}, s{sT0}, 23")
        P(f"s_lshl_b32 s{sCNT}, s{sS}, 16")
        P(f"s_add_u32 s{sT4}, s{sT4}, s{sCNT}")
        P(f"s_add_u32 s{sT4}, s{sT4}, 7340032")
        P(f"s_lshl_b32 s{sXOFF}, s{sT1}, 8")
        if o.get("latered", 1):
            P(f"s_and_b32 s{sR}, s2, 1")
            P(f"s_bfe_u32 s{sSRC}, s2, {3 | (1 << 16)}")
            P(f"s_lshl_b32 s{sSRC}, s{sSRC}, 1")
            P(f"s_or_b32 s{sR}, s{sR}, s{sSRC}")
            P(f"s_lshl_b32 s{sR}, s{sR}, 3")
            P(f"s_add_u32 s{sR}, s{sR}, s{sS}")
            P(f"s_and_b32 s{sSRC}, s2, 0x86")
            P(f"s_cmp_eq_u32 s{sSRC}, 4")
            P(f"s_cselect_b32 s{sR}, s{sR}, 32")
        else:
            P(f"s_mov_b32 s{sR}, s2")
        P(f"s_lshl_b32 s{sSRC}, s{sP}, 3")
        P(f"s_lshr_b32 s{sCNT}, s{sS}, 1")
        P(f"s_add_u32 s{sSRC}, s{sSRC}, s{sCNT}")
        for c, r in CONST.items():
            P(f"s_mov_b32 s{r}, {c}")
        for b, n in ((S_WQ, 0x100000), (S_K, 65536), (S_V, 65536), (S_X, 1024), (S_WS, WS_REC), (S_WO, 65024), (S_G, 1024), (S_OUT, 1024)):
            P(f"s_mov_b32 s{b+2}, {n}")
            P(f"s_mov_b32 s{b+3}, 0x00020000")
        P("s_waitcnt lgkmcnt(0)")
        P(f"s_load_dword s{sE}, s[30:31], 0")
        P(f"s_mov_b64 s[{S_X}:{S_X+1}], s[4:5]")
        P("s_bitcmp1_b32 s2, 3")
        P(f"s_cselect_b64 s[{S_WQ}:{S_WQ+1}], s[20:21], s[10:11]")
        P(f"s_cselect_b64 s[{S_K}:{S_K+1}], s[16:17], s[6:7]")
        P(f"s_cselect_b64 s[{S_V}:{S_V+1}], s[18:19], s[8:9]")
        P(f"s_cselect_b64 s[{S_WO}:{S_WO+1}], s[22:23], s[12:13]")
        P(f"s_mov_b64 s[{S_G}:{S_G+1}], s[24:25]")
        P(f"s_cmp_ge_u32 s{sR}, {NRED}")
        P("s_cbranch_scc1 L_GL_DONE")
        P(f"buffer_load_dwordx4 {v(GX,4)}, {v(vL16)}, {srd(S_X)}, 0 offen")
        P(f"buffer_load_dwordx4 {v(GX+4,4)}, {v(vL16)}, {srd(S_G)}, 0 offen")
        P.label("L_GL_DONE")
        P(f"buffer_load_ushort {v(vT+8-1)}, {v(vXs)}, {srd(S_X)}, s{sXOFF} offen")
        P(f"s_add_u32 s{S_WQ}, s{S_WQ}, s{sT3}")
        P(f"s_addc_u32 s{S_WQ+1}, s{S_WQ+1}, 0")
        for t in range(8):
            P(f"buffer_load_dwordx4 {v(W+4*t,4)}, {v(vWq)}, {srd(S_WQ)}, {soff(8192*t)} offen{nt}")
        P(f"s_add_u32 s{S_K}, s{S_K}, s{sT4}")
        P(f"s_addc_u32 s{S_K+1}, s{S_K+1}, 0")
        P(f"s_add_u32 s{S_V}, s{S_V}, s{sT4}")
        P(f"s_addc_u32 s{S_V+1}, s{S_V+1}, 0")
        P(f"s_mov_b64 s[{S_WS}:{S_WS+1}], s[30:31]")
        GQ = X + 32
        GS = X + 32
        def kload(n): P(f"buffer_load_dwordx4 {v(K+4*n,4)}, {v(vK)}, {srd(S_K)}, {soff(16384*(n>>2))} offen offset:{1024*(n&3)}{nt}")
        def vload(n): P(f"buffer_load_dwordx4 {v(V+4*n,4)}, {v(vV)}, {srd(S_V)}, {soff(16384*(n>>2))} offen offset:{1024*(n&3)}{nt}")
        def woload(u): P(f"buffer_load_dwordx4 {v(W+4*u,4)}, {v(vWo)}, {srd(S_WO)}, {soff(4096*(u>>1))} offen offset:{256*(u&1)}{nt}")
        def qpload(i): P(f"buffer_load_dwordx4 {v(GQ+4*i,4)}, {v(vV)}, {srd(S_WS)}, s{sQPLD} offen offset:{1024*i} sc1")
        def stload(i=0): P(f"buffer_load_dwordx4 {v(GS,4)}, {v(vL16)}, {srd(S_WS)}, s{sSTLD} offen sc1")
        FN = {"k": kload, "v": vload, "wo": woload, "qp": qpload, "st": stload}
        queue = [("xs", 0)] + [("wq", t) for t in range(8)]
        QPOS = o.get("qpos", 16)
        pend = [("k", n) for n in range(16)] + [("v", n) for n in range(16)]
        pend = pend[:QPOS] + [("qp", 0), ("qp", 1)] + pend[QPOS:]
        STPOS = o.get("stpos", 0)
        wl = [("wo", u) for u in range(8)]
        pend += wl[:STPOS] + [("st", 0)] + wl[STPOS:]
        WIN = o.get("win", 8)
        def issue(n=1, win=None):
            for _ in range(n):
                if not pend: return
                if win is not None: P(f"s_waitcnt vmcnt({win-1})")
                kind, i = pend.pop(0)
                FN[kind](i); queue.append((kind, i))
        def issue_until(op, win=None):
            while op not in queue: issue(1, win)
        def wait_for(op):
            P(f"s_waitcnt vmcnt({len(queue) - 1 - queue.index(op)})")
        NK0 = o.get("nk0", 2)
        issue(NK0)
        P(f"v_and_b32 {v(t1)}, 1, {v(vL)}")
        P(f"v_lshlrev_b32 {v(t1)}, 4, {v(t1)}")
        P(f"s_mov_b32 s{sT3}, 0xffff")
        P(f"v_lshlrev_b32_e64 {v(t1)}, {v(t1)}, s{sT3}")
        P(f"v_bfe_u32 {v(t2)}, {v(vL)}, 1, 3")
        for k in range(4):
            P(f"v_cmp_eq_u32 vcc, {k}, {v(t2)}")
            P(f"v_cndmask_b32 {v(vM+k)}, 0, {v(t1)}, vcc")
        for k in range(4):
            P(f"v_cmp_eq_u32 vcc, {4+k}, {v(t2)}")
            P(f"v_cndmask_b32 {v(vM2+k)}, 0, {v(t1)}, vcc")
        P(f"s_mov_b64 s[{S_OUT}:{S_OUT+1}], s[26:27]")
        P(f"s_and_b32 s{sT3}, s{sSRC}, 63")
        P(f"s_lshl_b32 s{sT3}, s{sT3}, 16")
        P(f"s_and_b32 s{sT4}, s{sS}, 1")
        P(f"s_lshl_b32 s{sT4}, s{sT4}, 9")
        P(f"s_add_u32 s{sT3}, s{sT3}, s{sT4}")
        P(f"s_add_u32 s{S_WO}, s{S_WO}, s{sT3}")
        P(f"s_addc_u32 s{S_WO+1}, s{S_WO+1}, 0")
        P(f"s_lshl_b32 s{sQPLD}, s{sP}, 14")
        P(f"s_add_u32 s{sQPLD}, s{sQPLD}, {QP_OFF}")
        P(f"s_lshl_b32 s{sT3}, s{sT2}, 12")
        P(f"s_lshl_b32 s{sT4}, s{sT1}, 9")
        P(f"s_add_u32 s{sQPST}, s{sQPLD}, s{sT3}")
        P(f"s_add_u32 s{sQPST}, s{sQPST}, s{sT4}")
        P(f"s_lshl_b32 s{sT3}, s{sP}, 2")
        P(f"s_add_u32 s{sT4}, s{sT3}, s{sW}")
        P(f"s_lshl_b32 s{sOPST}, s{sT4}, 13")
        P(f"s_lshl_b32 s{sT4}, s{sS}, 6")
        P(f"s_add_u32 s{sOPST}, s{sOPST}, s{sT4}")
        P(f"s_add_u32 s{sOPST}, s{sOPST}, {OP_OFF}")
        P(f"s_lshl_b32 s{sSTST}, s{sP}, 12")
        P(f"s_lshl_b32 s{sT4}, s{sS}, 2")
        P(f"s_add_u32 s{sT4}, s{sT4}, s{sW}")
        P(f"s_lshl_b32 s{sT4}, s{sT4}, 4")
        P(f"s_add_u32 s{sSTST}, s{sSTST}, s{sT4}")
        P(f"s_add_u32 s{sSTST}, s{sSTST}, {ST_OFF}")
        P(f"s_add_u32 s{sT4}, s{sT3}, s{sT1}")
        P(f"s_lshl_b32 s{sOPLD}, s{sT4}, 13")
        P(f"s_lshl_b32 s{sSTLD}, s{sT4}, 10")
        P(f"s_add_u32 s{sSTLD}, s{sSTLD}, {ST_OFF}")
        P(f"s_bfe_u32 s{sT4}, s{sS}, {1 | (1 << 16)}")
        P(f"s_lshl_b32 s{sT4}, s{sT4}, 2")
        P(f"s_add_u32 s{sT4}, s{sT4}, s{sW}")
        P(f"s_lshl_b32 s{sT4}, s{sT4}, 10")
        P(f"s_add_u32 s{sOPLD}, s{sOPLD}, s{sT4}")
        P(f"s_add_u32 s{sOPLD}, s{sOPLD}, {OP_OFF}")
        P(f"s_and_b32 s{sT4}, s{sS}, 1")
        P(f"s_lshl_b32 s{sFINST}, s{sT4}, 17")
        P(f"s_lshl_b32 s{sT4}, s{sSRC}, 4")
        P(f"s_add_u32 s{sFINST}, s{sFINST}, s{sT4}")
        P(f"s_add_u32 s{sFINST}, s{sFINST}, {FIN_OFF}")
        P(f"s_lshl_b32 s{sT4}, s{sR}, 2")
        P(f"s_add_u32 s{sT4}, s{sT4}, s{sW}")
        P(f"s_lshl_b32 s{sFINLD}, s{sT4}, 11")
        P(f"s_add_u32 s{sFINLD}, s{sFINLD}, {FIN_OFF}")
        P(f"s_mov_b32 s{sMASK}, 0xffffff00")
        P(f"s_mov_b32 s{sLOG2E}, 0x3fb8aa3b")
        P(f"s_mov_b32 s{sSCL}, 0x3db504f3")
        P(f"s_mov_b32 s{sSCL+1}, 0x3db504f3")
        P(f"s_mov_b32 s{sHI}, 0xffff0000")
        P(f"s_mov_b32 s{sCNT}, 20000")
        P(f"v_mov_b32 {v(t0)}, s{sW}")
        P(f"v_and_b32 {v(t1)}, 15, {v(vL)}")
        P(f"v_lshlrev_b32 {v(t1)}, 5, {v(t1)}")
        P(f"v_lshrrev_b32 {v(t2)}, 4, {v(vL)}")
        P(f"v_lshl_or_b32 {v(t1)}, {v(t2)}, 4, {v(t1)}")
        P(f"v_lshl_or_b32 {v(vQa)}, {v(t0)}, 9, {v(t1)}")
        P(f"v_and_b32 {v(t1)}, 31, {v(vL)}")
        P(f"v_lshlrev_b32 {v(t1)}, 3, {v(t1)}")
        P(f"v_lshrrev_b32 {v(t3)}, 5, {v(vL)}")
        P(f"v_lshl_or_b32 {v(t1)}, {v(t3)}, 1, {v(t1)}")
        P(f"s_mul_i32 s{sT3}, s{sW}, 272")
        P(f"s_add_u32 s{sT3}, s{sT3}, {L_QL}")
        P(f"v_add_u32 {v(vQw)}, s{sT3}, {v(t1)}")
        P(f"v_and_b32 {v(t1)}, 3, {v(vL)}")
        P(f"v_mul_u32_u24 {v(t3)}, 272, {v(t1)}")
        P(f"v_lshrrev_b32 {v(vQr)}, 2, {v(vL)}")
        P(f"v_lshl_add_u32 {v(vQr)}, {v(vQr)}, 4, {v(t3)}")
        P(f"v_add_u32 {v(vQr)}, {L_QL}, {v(vQr)}")
        P(f"v_lshlrev_b32 {v(vMx)}, 2, {v(t1)}")
        P(f"v_add_u32 {v(vMx)}, {L_MX}, {v(vMx)}")
        P(f"v_mul_u32_u24 {v(t3)}, {ORED_H}, {v(t1)}")
        P(f"v_lshl_add_u32 {v(t3)}, {v(t2)}, 7, {v(t3)}")
        P(f"v_bfe_u32 {v(t1)}, {v(vL)}, 2, 2")
        P(f"v_lshl_add_u32 {v(t3)}, {v(t1)}, 3, {v(t3)}")
        P(f"s_mul_i32 s{sT3}, s{sW}, {ORED_W}")
        P(f"s_add_u32 s{sT3}, s{sT3}, {L_ORED}")
        P(f"v_add_u32 {v(vOw)}, s{sT3}, {v(t3)}")
        P(f"s_mul_i32 s{sT3}, s{sW}, {ORED_H}")
        P(f"s_add_u32 s{sT3}, s{sT3}, {L_ORED}")
        P(f"v_add_u32 {v(vOr)}, s{sT3}, {v(vL16)}")
        P(f"v_and_b32 {v(t1)}, 1, {v(t2)}")
        P(f"v_lshlrev_b32 {v(t1)}, 1, {v(t1)}")
        P(f"v_lshrrev_b32 {v(t3)}, 1, {v(t2)}")
        P(f"v_or_b32 {v(t1)}, {v(t1)}, {v(t3)}")
        P(f"v_and_b32 {v(t3)}, 15, {v(vL)}")
        P(f"v_lshlrev_b32 {v(t3)}, 4, {v(t3)}")
        P(f"v_lshl_or_b32 {v(t3)}, {v(t1)}, 10, {v(t3)}")
        P(f"v_lshl_or_b32 {v(vWo)}, {v(t0)}, 14, {v(t3)}")
        P(f"v_mov_b32 {v(t1)}, 0xff800000")
        P(f"ds_write_b32 {v(vMx)}, {v(t1)}")
        XS = vT + 7
        wait_for(("xs", 0))
        P(f"v_lshl_or_b32 {v(XS)}, {v(XS)}, 16, {v(XS)}")
        for t in range(8):
            for k in range(4):
                P(f"v_and_b32_dpp {v(X+4*t+k)}, {v(XS)}, {v(vM+k)} row_newbcast:{t} row_mask:0xf bank_mask:0xf")
        D = vT + 4
        for t in range(8):
            wait_for(("wq", t))
            P(f"v_mfma_f32_16x16x32_bf16 {v(D,4)}, {v(X+4*t,4)}, {v(W+4*t,4)}, {'0' if t==0 else v(D,4)}")
            issue(1)
        self.stamp("wq_done")
        P("s_mov_b32 exec_hi, 0")
        P(f"ds_write_b128 {v(vQa)}, {v(D,4)} offset:{L_QRED}")
        P("s_mov_b32 exec_hi, -1")
        P("s_waitcnt lgkmcnt(0)")
        P("s_barrier")
        P(f"s_add_u32 s{sE}, s{sE}, 1")
        P(f"s_and_b32 s{sT3}, s{sE}, 0xff")
        P(f"v_mov_b32 {v(vTau)}, s{sT3}")
        P(f"s_cmp_lg_u32 s{sW}, 0")
        P("s_cbranch_scc1 L_QPUB_DONE")
        P("s_mov_b32 exec_hi, 0")
        for k in range(4):
            P(f"ds_read_b128 {v(X+4*k,4)}, {v(vL16)} offset:{L_QRED+512*k}")
        P("s_waitcnt lgkmcnt(0)")
        self.sum4(X)
        for k in range(4):
            P(f"v_and_or_b32 {v(X+k)}, {v(X+k)}, s{sMASK}, {v(vTau)}")
        P(f"buffer_store_dwordx4 {v(X,4)}, {v(vL16)}, {srd(S_WS)}, s{sQPST} offen sc1")
        P("s_mov_b32 exec_hi, -1")
        P.label("L_QPUB_DONE")
        P("s_nop 1")
        self.stamp("q_pub")
        P(f"s_cmp_ge_u32 s{sR}, {NRED}")
        P("s_cbranch_scc1 L_GATE_DONE")
        self.gate()
        P.label("L_GATE_DONE")
        BS = X + 16
        for k in range(16):
            P(f"v_mov_b32 {v(BS+k)}, 0")
        issue_until(("qp", 1), WIN)
        issue_until(("k", 15), WIN)
        NVW = o.get("nvw", WIN - 1)
        issue(NVW, WIN)
        if self.prof and o.get("kst", 1):
            wait_for(("k", 15)); self.stamp("k15")
        wait_for(("qp", 1))
        wait_for(("k", 15))
        if self.prof and o.get("kst", 1): self.stamp("qp1")
        issue(o.get("nvx", 3))
        P.label("L_QCHK")
        self.tagcheck(list(range(GQ, GQ+8)), vT)
        P("s_cbranch_vccz L_QOK")
        P(f"s_sub_u32 s{sCNT}, s{sCNT}, 1")
        P("s_cbranch_scc1 L_QOK")
        qpload(0); qpload(1)
        P("s_waitcnt vmcnt(0)")
        P("s_branch L_QCHK")
        P.label("L_QOK")
        self.stamp("q_got"); self.snap(0)
        P(f"v_pk_add_f32 {v(GQ,2)}, {v(GQ,2)}, {v(GQ+4,2)}")
        P(f"v_pk_add_f32 {v(GQ+2,2)}, {v(GQ+2,2)}, {v(GQ+6,2)}")
        P(f"v_permlane32_swap_b32 {v(GQ)}, {v(GQ+1)}")
        P(f"v_permlane32_swap_b32 {v(GQ+2)}, {v(GQ+3)}")
        P(f"v_add_f32 {v(GQ)}, {v(GQ)}, {v(GQ+1)}")
        P(f"v_add_f32 {v(GQ+2)}, {v(GQ+2)}, {v(GQ+3)}")
        P(f"v_cvt_pk_bf16_f32 {v(GQ)}, {v(GQ)}, {v(GQ+2)}")
        P(f"ds_write_b16 {v(vQw)}, {v(GQ)}")
        P(f"ds_write_b16_d16_hi {v(vQw)}, {v(GQ)} offset:4")
        P("s_waitcnt lgkmcnt(0)")
        P("s_barrier")
        BQ = vT + 4
        P(f"ds_read_b128 {v(BQ,4)}, {v(vQr)}")
        P("s_waitcnt lgkmcnt(0)")
        DS = X
        S = X + 32
        def mf(n): P(f"v_mfma_f32_16x16x32_bf16 {v(DS+4*(n&3),4)}, {v(K+4*n,4)}, {v(BQ,4)}, 0")
        def fold(n):
            g, u = n >> 2, n & 3
            for b in range(4):
                src = DS + 4*(n&3) + b
                if b == 0:
                    P(f"v_mov_b32_dpp {v(S+g)}, {v(src)} {ror(4*(u-b))} row_mask:0xf bank_mask:{1<<u:#x}")
                else:
                    P(f"v_add_f32_dpp {v(S+g)}, {v(src)}, {v(S+g)} {ror(4*(u-b))} row_mask:0xf bank_mask:{1<<u:#x}")
        mf(0); mf(1); mf(2)
        for n in range(16):
            fold(n)
            if n + 3 < 16: mf(n + 3)
        R = X + 36
        def rnd():
            P(f"v_cvt_pk_bf16_f32 {v(R)}, {v(S)}, {v(S+1)}")
            P(f"v_cvt_pk_bf16_f32 {v(R+1)}, {v(S+2)}, {v(S+3)}")
            P(f"v_lshlrev_b32 {v(S)}, 16, {v(R)}")
            P(f"v_and_b32 {v(S+1)}, s{sHI}, {v(R)}")
            P(f"v_lshlrev_b32 {v(S+2)}, 16, {v(R+1)}")
            P(f"v_and_b32 {v(S+3)}, s{sHI}, {v(R+1)}")
        rnd()
        P(f"v_pk_mul_f32 {v(S,2)}, {v(S,2)}, s[{sSCL}:{sSCL+1}]")
        P(f"v_pk_mul_f32 {v(S+2,2)}, {v(S+2,2)}, s[{sSCL}:{sSCL+1}]")
        rnd()
        Mx = X + 40
        P(f"v_max3_f32 {v(Mx)}, {v(S)}, {v(S+1)}, {v(S+2)}")
        P(f"v_max_f32 {v(Mx)}, {v(Mx)}, {v(S+3)}")
        P(f"v_max_f32_dpp {v(Mx)}, {v(Mx)}, {v(Mx)} row_ror:4 row_mask:0xf bank_mask:0xf")
        P(f"v_max_f32_dpp {v(Mx)}, {v(Mx)}, {v(Mx)} row_ror:8 row_mask:0xf bank_mask:0xf")
        P(f"ds_max_f32 {v(vMx)}, {v(Mx)}")
        P("s_waitcnt lgkmcnt(0)")
        P("s_barrier")
        P(f"ds_read_b32 {v(Mx)}, {v(vMx)}")
        P("s_waitcnt lgkmcnt(0)")
        P(f"v_mul_f32 {v(R)}, s{sLOG2E}, {v(Mx)}")
        for g in range(4):
            P(f"v_fma_f32 {v(S+g)}, {v(S+g)}, s{sLOG2E}, -{v(R)}")
        for g in range(4):
            P(f"v_exp_f32 {v(S+g)}, {v(S+g)}")
        PL = X + 44; PH = X + 36
        for g in range(4):
            P(f"v_cvt_pk_bf16_f32 {v(PL+g)}, {v(S+g)}, 0")
            P(f"v_cvt_pk_bf16_f32 {v(PH+g)}, 0, {v(S+g)}")
        P(f"v_pk_add_f32 {v(S,2)}, {v(S,2)}, {v(S+2,2)}")
        P(f"v_add_f32 {v(S)}, {v(S)}, {v(S+1)}")
        P(f"v_add_f32_dpp {v(S)}, {v(S)}, {v(S)} row_ror:4 row_mask:0xf bank_mask:0xf")
        P(f"v_add_f32_dpp {v(S)}, {v(S)}, {v(S)} row_ror:8 row_mask:0xf bank_mask:0xf")
        P(f"v_mov_b32 {v(S+1)}, {v(S)}")
        P(f"v_permlane16_swap_b32 {v(S)}, {v(S+1)}")
        P(f"v_add_f32 {v(S)}, {v(S)}, {v(S+1)}")
        P(f"v_mov_b32 {v(S+1)}, {v(S)}")
        P(f"v_permlane32_swap_b32 {v(S)}, {v(S+1)}")
        P(f"v_add_f32 {v(S)}, {v(S)}, {v(S+1)}")
        P(f"v_or_b32 {v(Mx)}, {v(Mx)}, {v(vTau)}")
        P(f"v_and_or_b32 {v(Mx+1)}, {v(S)}, s{sMASK}, {v(vTau)}")
        P(f"v_mov_b32 {v(Mx+2)}, {v(vTau)}")
        P(f"v_mov_b32 {v(Mx+3)}, {v(vTau)}")
        P(f"v_lshlrev_b32 {v(vT)}, 10, {v(vL)}")
        P("s_mov_b64 exec, 15")
        P(f"buffer_store_dwordx4 {v(Mx,4)}, {v(vT)}, {srd(S_WS)}, s{sSTST} offen sc1")
        P("s_mov_b64 exec, -1")
        self.stamp("sm_done")
        ACC = X + 48
        queue.append(("sts", 0))
        issue(o.get("pre", 2))
        for n in range(16):
            g, u0 = n >> 2, n & 3
            for m in range(2):
                bs = BS + 4 * ((2*n + m) & 3)
                src = (PL if m == 0 else PH) + g
                for u in range(4):
                    P(f"v_mov_b32_dpp {v(bs+u)}, {v(src)} {ror(4*(u-u0))} row_mask:0xf bank_mask:{1<<u:#x}")
                if m == 0:
                    issue_until(("v", n))
                    wait_for(("v", n))
                P(f"v_mfma_f32_16x16x32_bf16 {v(ACC+4*m,4)}, {v(V+4*n,4)}, {v(bs,4)}, {'0' if n==0 else v(ACC+4*m,4)}")
            issue(1)
        issue(99)
        self.stamp("pv_done")
        for r in range(4):
            P(f"ds_write2_b32 {v(vOw)}, {v(ACC+r)}, {v(ACC+4+r)} offset0:{8*r} offset1:{8*r+1}")
        P("s_waitcnt lgkmcnt(0)")
        P("s_barrier")
        O = X
        P("s_mov_b32 exec_hi, 0")
        for k in range(4):
            P(f"ds_read_b128 {v(O+4*k,4)}, {v(vOr)} offset:{ORED_W*k}")
        P(f"v_lshrrev_b32 {v(vT+3)}, 2, {v(vL)}")
        P(f"v_lshlrev_b32 {v(vT+3)}, 10, {v(vT+3)}")
        P(f"v_and_b32 {v(vT+4)}, 3, {v(vL)}")
        P(f"v_lshl_or_b32 {v(vT+3)}, {v(vT+4)}, 4, {v(vT+3)}")
        P("s_waitcnt lgkmcnt(0)")
        self.sum4(O)
        for k in range(4):
            P(f"v_and_or_b32 {v(O+k)}, {v(O+k)}, s{sMASK}, {v(vTau)}")
        P(f"buffer_store_dwordx4 {v(O,4)}, {v(vT+3)}, {srd(S_WS)}, s{sOPST} offen sc1")
        P("s_mov_b32 exec_hi, -1")
        queue.append(("ops", 0))
        GO = X + 36
        P(f"buffer_load_dwordx4 {v(GO,4)}, {v(vL16)}, {srd(S_WS)}, s{sOPLD} offen sc1")
        queue.append(("og", 0))
        self.stamp("o_pub")
        wait_for(("st", 0))
        P.label("L_SCHK")
        self.tagcheck([GS, GS+1, GS+2, GS+3], vT)
        P("s_cbranch_vccz L_SOK")
        P(f"s_sub_u32 s{sCNT}, s{sCNT}, 1")
        P("s_cbranch_scc1 L_SOK")
        stload()
        P("s_waitcnt vmcnt(0)")
        P("s_branch L_SCHK")
        P.label("L_SOK")
        a, b_ = vT, vT+1
        P(f"v_max_f32_dpp {v(a)}, {v(GS)}, {v(GS)} row_ror:4 row_mask:0xf bank_mask:0xf")
        P(f"v_max_f32_dpp {v(a)}, {v(a)}, {v(a)} row_ror:8 row_mask:0xf bank_mask:0xf")
        P(f"v_mov_b32 {v(b_)}, {v(a)}")
        P(f"v_permlane16_swap_b32 {v(a)}, {v(b_)}")
        P(f"v_max_f32 {v(a)}, {v(a)}, {v(b_)}")
        P(f"v_mov_b32 {v(b_)}, {v(a)}")
        P(f"v_permlane32_swap_b32 {v(a)}, {v(b_)}")
        P(f"v_max_f32 {v(a)}, {v(a)}, {v(b_)}")
        P(f"v_mul_f32 {v(a)}, s{sLOG2E}, {v(a)}")
        P(f"v_fma_f32 {v(GS)}, {v(GS)}, s{sLOG2E}, -{v(a)}")
        P(f"v_exp_f32 {v(GS)}, {v(GS)}")
        P(f"v_mul_f32 {v(a)}, {v(GS)}, {v(GS+1)}")
        for n in (1, 2, 4, 8):
            P(f"v_add_f32_dpp {v(a)}, {v(a)}, {v(a)} row_ror:{n} row_mask:0xf bank_mask:0xf")
        P(f"v_mov_b32 {v(b_)}, {v(a)}")
        P(f"v_permlane16_swap_b32 {v(a)}, {v(b_)}")
        P(f"v_add_f32 {v(a)}, {v(a)}, {v(b_)}")
        P(f"v_mov_b32 {v(b_)}, {v(a)}")
        P(f"v_permlane32_swap_b32 {v(a)}, {v(b_)}")
        P(f"v_add_f32 {v(a)}, {v(a)}, {v(b_)}")
        P(f"v_rcp_f32 {v(a)}, {v(a)}")
        P(f"v_mul_f32 {v(GS)}, {v(GS)}, {v(a)}")
        P(f"v_mov_b32 {v(GS+1)}, {v(GS)}")
        self.stamp("st_got"); self.snap(1)
        P("s_waitcnt vmcnt(0)")
        P.label("L_OCHK")
        self.tagcheck([GO, GO+1, GO+2, GO+3], vT)
        P("s_cbranch_vccz L_OOK")
        P(f"s_sub_u32 s{sCNT}, s{sCNT}, 1")
        P("s_cbranch_scc1 L_OOK")
        P(f"buffer_load_dwordx4 {v(GO,4)}, {v(vL16)}, {srd(S_WS)}, s{sOPLD} offen sc1")
        P("s_waitcnt vmcnt(0)")
        P("s_branch L_OCHK")
        P.label("L_OOK")
        self.stamp("o_got"); self.snap(2)
        P(f"v_pk_mul_f32 {v(GO,2)}, {v(GO,2)}, {v(GS,2)}")
        P(f"v_pk_mul_f32 {v(GO+2,2)}, {v(GO+2,2)}, {v(GS,2)}")
        P(f"v_permlane32_swap_b32 {v(GO)}, {v(GO+1)}")
        P(f"v_permlane32_swap_b32 {v(GO+2)}, {v(GO+3)}")
        P(f"v_add_f32 {v(GO)}, {v(GO)}, {v(GO+1)}")
        P(f"v_add_f32 {v(GO+2)}, {v(GO+2)}, {v(GO+3)}")
        P(f"v_permlane16_swap_b32 {v(GO)}, {v(GO+2)}")
        P(f"v_add_f32 {v(GO)}, {v(GO)}, {v(GO+2)}")
        P(f"v_add_f32_dpp {v(GO)}, {v(GO)}, {v(GO)} row_ror:4 row_mask:0xf bank_mask:0xf")
        P(f"v_add_f32_dpp {v(GO)}, {v(GO)}, {v(GO)} row_ror:8 row_mask:0xf bank_mask:0xf")
        P(f"v_cvt_pk_bf16_f32 {v(GO)}, {v(GO)}, {v(GO)}")
        SEL = X
        D2 = vT + 4
        for u in range(8):
            mk = vM if (u & 1) == 0 else vM2
            for k in range(4):
                P(f"v_and_b32_dpp {v(SEL+4*u+k)}, {v(GO)}, {v(mk+k)} row_newbcast:{u>>1} row_mask:0xf bank_mask:0xf")
            if u >= 1:
                P(f"v_mfma_f32_16x16x32_bf16 {v(D2,4)}, {v(SEL+4*(u-1),4)}, {v(W+4*(u-1),4)}, {'0' if u==1 else v(D2,4)}")
        P(f"v_mfma_f32_16x16x32_bf16 {v(D2,4)}, {v(SEL+28,4)}, {v(W+28,4)}, {v(D2,4)}")
        P(f"v_lshrrev_b32 {v(vT)}, 5, {v(vL)}")
        P(f"v_lshlrev_b32 {v(vT)}, 9, {v(vT)}")
        P(f"v_and_b32 {v(vT+1)}, 15, {v(vL)}")
        P(f"v_lshl_or_b32 {v(vT)}, {v(vT+1)}, 5, {v(vT)}")
        P(f"v_bfe_u32 {v(vT+1)}, {v(vL)}, 4, 1")
        P(f"v_lshl_or_b32 {v(vT)}, {v(vT+1)}, 4, {v(vT)}")
        P(f"s_lshl_b32 s{sT3}, s{sW}, 10")
        P(f"v_add_u32 {v(vT)}, s{sT3}, {v(vT)}")
        P(f"ds_write_b128 {v(vT)}, {v(D2,4)} offset:{L_QRED}")
        P("s_waitcnt lgkmcnt(0)")
        P("s_barrier")
        self.stamp("wo_done")
        P(f"s_cmp_lg_u32 s{sW}, 0")
        P("s_cbranch_scc1 L_APUB_DONE")
        for k in range(4):
            P(f"ds_read_b128 {v(X+4*k,4)}, {v(vL16)} offset:{L_QRED+1024*k}")
        P(f"v_lshlrev_b32 {v(vT)}, 11, {v(vL)}")
        P("s_waitcnt lgkmcnt(0)")
        self.sum4(X)
        for k in range(4):
            P(f"v_and_or_b32 {v(X+k)}, {v(X+k)}, s{sMASK}, {v(vTau)}")
        P(f"buffer_store_dwordx4 {v(X,4)}, {v(vT)}, {srd(S_WS)}, s{sFINST} offen sc1")
        P.label("L_APUB_DONE")
        P("s_nop 1")
        self.stamp("a_pub")
        P(f"s_cmp_ge_u32 s{sR}, {NRED}")
        P("s_cbranch_scc1 L_FIN_DONE")
        F = X + 32
        P.label("L_FG")
        P(f"buffer_load_dwordx4 {v(F,4)}, {v(vL16)}, {srd(S_WS)}, s{sFINLD} offen sc1")
        P(f"buffer_load_dwordx4 {v(F+4,4)}, {v(vL16)}, {srd(S_WS)}, s{sFINLD} offen offset:1024 sc1")
        P("s_waitcnt vmcnt(0)")
        self.tagcheck(list(range(F, F+8)), vT)
        P("s_cbranch_vccz L_FOK")
        P(f"s_sub_u32 s{sCNT}, s{sCNT}, 1")
        P("s_cbranch_scc0 L_FG")
        P.label("L_FOK")
        self.stamp("f_got")
        P(f"v_pk_mul_f32 {v(F,2)}, {v(F,2)}, {v(vCA,2)}")
        P(f"v_pk_mul_f32 {v(F+2,2)}, {v(F+2,2)}, {v(vCA,2)}")
        P(f"v_pk_fma_f32 {v(F,2)}, {v(F+4,2)}, {v(vCB,2)}, {v(F,2)}")
        P(f"v_pk_fma_f32 {v(F+2,2)}, {v(F+6,2)}, {v(vCB,2)}, {v(F+2,2)}")
        P(f"v_permlane32_swap_b32 {v(F)}, {v(F+1)}")
        P(f"v_permlane32_swap_b32 {v(F+2)}, {v(F+3)}")
        P(f"v_add_f32 {v(F)}, {v(F)}, {v(F+1)}")
        P(f"v_add_f32 {v(F+2)}, {v(F+2)}, {v(F+3)}")
        P(f"v_permlane16_swap_b32 {v(F)}, {v(F+2)}")
        P(f"v_add_f32 {v(F)}, {v(F)}, {v(F+2)}")
        for n in (8, 4, 2, 1):
            P(f"v_add_f32_dpp {v(F)}, {v(F)}, {v(F)} row_ror:{n} row_mask:0xf bank_mask:0xf")
        P(f"v_cvt_pk_bf16_f32 {v(F)}, {v(F)}, {v(F)}")
        P(f"v_bfe_u32 {v(vT)}, {v(vWo)}, 10, 2")
        P(f"v_lshlrev_b32 {v(vT)}, 1, {v(vT)}")
        P(f"s_lshl_b32 s{sT3}, s{sR}, 2")
        P(f"s_add_u32 s{sT3}, s{sT3}, s{sW}")
        P(f"s_lshl_b32 s{sT4}, s{sT3}, 3")
        P("s_mov_b32 exec_lo, 0x00010001")
        P("s_mov_b32 exec_hi, 0x00010001")
        P(f"buffer_store_short {v(F)}, {v(vT)}, {srd(S_OUT)}, s{sT4} offen")
        P(f"s_cmp_lg_u32 s{sT3}, 0")
        P("s_cbranch_scc1 L_FIN_DONE")
        P(f"v_mov_b32 {v(vT+2)}, s{sE}")
        P(f"v_mov_b32 {v(vT+3)}, 0")
        P("s_mov_b64 exec, 1")
        P(f"buffer_store_dword {v(vT+2)}, {v(vT+3)}, {srd(S_WS)}, 0 offen sc1")
        P.label("L_FIN_DONE")
        P("s_mov_b64 exec, -1")
        self.stamp("end")
        if self.prof:
            P("s_waitcnt lgkmcnt(0)")
            P(f"s_lshl_b32 s{sT3}, s2, 2")
            P(f"s_add_u32 s{sT3}, s{sT3}, s{sW}")
            P(f"s_lshl_b32 s{sT3}, s{sT3}, 7")
            P(f"s_add_u32 s{sT3}, s{sT3}, {PROF_OFF}")
            P(f"v_mov_b32 {v(X)}, s100")
            for i in range(15):
                P(f"v_mov_b32 {v(X+1+i)}, " + (f"s{4+2*i}" if i < self.nst else f"s{sCNT}"))
            for i in range(4):
                P(f"v_mov_b32 {v(X+16+i)}, s{56+i}")
            P(f"v_mov_b32 {v(vT)}, 0")
            P("s_mov_b64 exec, 1")
            for k in range(5):
                P(f"buffer_store_dwordx4 {v(X+4*k,4)}, {v(vT)}, {srd(S_WS)}, s{sT3} offen offset:{16*k}")
        P.label("L_END")
        P("s_endpgm")

    def sum4(self, B):
        P = self.P
        P(f"v_pk_add_f32 {v(B,2)}, {v(B,2)}, {v(B+4,2)}")
        P(f"v_pk_add_f32 {v(B+2,2)}, {v(B+2,2)}, {v(B+6,2)}")
        P(f"v_pk_add_f32 {v(B+8,2)}, {v(B+8,2)}, {v(B+12,2)}")
        P(f"v_pk_add_f32 {v(B+10,2)}, {v(B+10,2)}, {v(B+14,2)}")
        P(f"v_pk_add_f32 {v(B,2)}, {v(B,2)}, {v(B+8,2)}")
        P(f"v_pk_add_f32 {v(B+2,2)}, {v(B+2,2)}, {v(B+10,2)}")

    def gate(self):
        P = self.P
        A = GX; B = GX + 4; T = V + 40
        acc = T + 6
        P(f"v_mov_b32 {v(acc)}, 0")
        for k in range(4):
            P(f"v_lshlrev_b32 {v(T)}, 16, {v(A+k)}")
            P(f"v_and_b32 {v(T+1)}, s{sHI}, {v(A+k)}")
            P(f"v_lshlrev_b32 {v(T+2)}, 16, {v(B+k)}")
            P(f"v_and_b32 {v(T+3)}, s{sHI}, {v(B+k)}")
            P(f"v_pk_mul_f32 {v(T,2)}, {v(T,2)}, {v(T+2,2)}")
            P(f"v_cvt_pk_bf16_f32 {v(T+4)}, {v(T)}, {v(T+1)}")
            P(f"v_lshlrev_b32 {v(T)}, 16, {v(T+4)}")
            P(f"v_and_b32 {v(T+1)}, s{sHI}, {v(T+4)}")
            P(f"v_add_f32 {v(acc)}, {v(acc)}, {v(T)}")
            P(f"v_add_f32 {v(acc)}, {v(acc)}, {v(T+1)}")
        for n in (8, 4, 2, 1):
            P(f"v_add_f32_dpp {v(acc)}, {v(acc)}, {v(acc)} row_ror:{n} row_mask:0xf bank_mask:0xf")
        P(f"v_mov_b32 {v(T)}, {v(acc)}")
        P(f"v_permlane16_swap_b32 {v(acc)}, {v(T)}")
        P(f"v_add_f32 {v(acc)}, {v(acc)}, {v(T)}")
        P(f"v_mov_b32 {v(T)}, {v(acc)}")
        P(f"v_permlane32_swap_b32 {v(acc)}, {v(T)}")
        P(f"v_add_f32 {v(acc)}, {v(acc)}, {v(T)}")
        P(f"v_cvt_pk_bf16_f32 {v(acc)}, {v(acc)}, {v(acc)}")
        P(f"v_and_b32 {v(acc)}, s{sHI}, {v(acc)}")
        P(f"v_mul_f32 {v(acc)}, s{sLOG2E}, {v(acc)}")
        P(f"v_exp_f32_e64 {v(acc)}, -{v(acc)}")
        P(f"v_add_f32 {v(acc)}, 1.0, {v(acc)}")
        P(f"v_rcp_f32 {v(acc)}, {v(acc)}")
        P(f"v_cvt_pk_bf16_f32 {v(acc)}, {v(acc)}, {v(acc)}")
        P(f"v_and_b32 {v(vCA)}, s{sHI}, {v(acc)}")
        P(f"v_mov_b32 {v(vCA+1)}, {v(vCA)}")
        P(f"v_sub_f32 {v(T)}, 1.0, {v(vCA)}")
        P(f"v_cvt_pk_bf16_f32 {v(T)}, {v(T)}, {v(T)}")
        P(f"v_and_b32 {v(vCB)}, s{sHI}, {v(T)}")
        P(f"v_mov_b32 {v(vCB+1)}, {v(vCB)}")

def build(prof=False, nt=True, opts=None):
    g = G(prof, nt, opts)
    g.gen()
    body = g.P.finish(verbose=True)
    hdr = open("gated_mix__sliding_block_cached__sliding_block_cached__decode.s.ref").read().split("\n")
    top = []
    for ln in hdr:
        if ln.startswith("; @launch"):
            top.append(f"; @launch grid=(256,1,1) block=(256,1,1) lds={LDS_BYTES}")
        elif ln.startswith(KNAME + ":"):
            top.append(ln); break
        else:
            top.append(ln)
    tail = f"""
.section .rodata,"a"
.p2align 6
.amdhsa_kernel {KNAME}
  .amdhsa_next_free_vgpr 256
  .amdhsa_next_free_sgpr 102
  .amdhsa_accum_offset 256
  .amdhsa_group_segment_fixed_size 0
  .amdhsa_kernarg_size 112
  .amdhsa_user_sgpr_count 2
  .amdhsa_user_sgpr_kernarg_segment_ptr 1
  .amdhsa_system_sgpr_workgroup_id_x 1
.end_amdhsa_kernel
"""
    return "\n".join(top) + "\n" + body + tail, g.stnames

if __name__ == "__main__":
    ap = argparse.ArgumentParser()
    ap.add_argument("-o", default="gated_mix__sliding_block_cached__sliding_block_cached__decode.s")
    ap.add_argument("--prof", action="store_true")
    ap.add_argument("--no-nt", action="store_true")
    ap.add_argument("--opt", default="")
    a = ap.parse_args()
    opts = {}
    for kv in a.opt.split(","):
        if kv: k_, v_ = kv.split("="); opts[k_] = int(v_)
    txt, names = build(a.prof, not a.no_nt, opts)
    open(a.o, "w").write(txt)
    print("stamps:", ",".join(names))
    open(a.o + ".names", "w").write(",".join(names))
```

```python
import sys, argparse
sys.path.insert(0, "gen")
from asmlib import Prog

KNAME = "gated_mix__sliding_block_cached__sliding_block_cached__decode_kernel"

QP_OFF = 0x10000; OP_OFF = 0x50000; FIN_OFF = 0xF0000; PROF_OFF = 0x140000
OREC = 640
WS_REC = 0x200000
L_QRED = 0
L_QL = 4096; L_MX = 5248; L_ORED = 5376
ORED_H = 544; ORED_W = 4 * ORED_H
LDS_BYTES = L_ORED + 4 * ORED_W + 256
L_LS = 5280; L_F = 4096

S_WQ, S_K, S_V, S_X, S_WS, S_WO, S_G, S_OUT = 32, 36, 40, 44, 48, 52, 56, 60
def srd(b): return f"s[{b}:{b+3}]"
CONST = {4096: 64, 8192: 65, 12288: 66, 16384: 67, 24576: 69, 32768: 71, 40960: 72, 49152: 73, 57344: 74, 262144: 70, 524288: 3, 786432: 101}
def soff(x): return "0" if x == 0 else f"s{CONST[x]}"
sP, sS, sW, sE, sMASK, sLOG2E = 75, 76, 77, 78, 79, 80
sSCL = 82
sCNT = 84; sT0 = 85; sT1 = 86; sT2 = 87
sQPST, sQPLD, sOPST, sOPLD, sSTST, sSTLD, sFINST, sFINLD, sXOFF = 88, 89, 90, 91, 92, 93, 94, 95, 96
sHI = 97
sT3 = 98; sT4 = 99
sR = 81
sSRC = 68

vL, vWq, vK, vV, vTau, vXs, vWo = 1, 2, 3, 4, 5, 6, 7
vM = 8
vQa, vQw, vQr, vMx, vOw, vOr = 12, 13, 14, 15, 17, 18
vL16 = 19
vLs = 16
vOG = 96; vF = 97
vT = 20
vM2 = 28
W = 32; K = 64; V = 128; X = 192
GX = X + 56
vCA = X + 56; vCB = X + 58

def v(i, n=1): return f"v{i}" if n == 1 else f"v[{i}:{i+n-1}]"

def ror(n):
    n &= 15
    return "quad_perm:[0,1,2,3]" if n == 0 else f"row_ror:{n}"

class G:
    def __init__(self, prof=False, nt=True, opts=None):
        self.P = Prog(); self.prof = prof; self.nst = 0
        self.nt = " nt" if nt else ""
        self.o = opts or {}

    def stamp(self, name):
        if not self.prof: return
        i = self.nst; self.nst += 1
        assert i < 14
        self.P(f"s_memrealtime s[{4+2*i}:{5+2*i}]")
        self.stnames.append(name)

    def snap(self, i):
        if self.prof: self.P(f"s_mov_b32 s{56+i}, s{sCNT}")

    def tagcheck(self, regs, acc):
        P = self.P
        for r in regs:
            P(f"v_xor_b32 {v(r)}, {v(r)}, {v(vTau)}")
        rs = list(regs)
        P(f"v_or3_b32 {v(acc)}, {v(rs[0])}, {v(rs[1])}, {v(rs[2])}")
        rs = rs[3:]
        while rs:
            if len(rs) >= 2:
                P(f"v_or3_b32 {v(acc)}, {v(acc)}, {v(rs[0])}, {v(rs[1])}"); rs = rs[2:]
            else:
                P(f"v_or_b32 {v(acc)}, {v(acc)}, {v(rs[0])}"); rs = rs[1:]
        P(f"v_cmp_ne_u32_sdwa vcc, {v(acc)}, 0 src0_sel:BYTE_0 src1_sel:DWORD")

    def gen(self):
        P = self.P; nt = self.nt; o = self.o
        self.stnames = []
        DUAL = o.get("dual", 1)
        NRED = 16
        P(f"s_cmp_ge_u32 s2, 256")
        P(f"s_cbranch_scc1 L_END")
        if o.get("ipf", 0):
            P("s_getpc_b64 s[98:99]")
            P("v_lshlrev_b32 v254, 5, v0")
            P("v_min_u32 v254, CODE_LAST, v254")
            P("global_load_dword v255, v254, s[98:99]")
        P("s_load_dwordx16 s[4:19], s[0:1], 0")
        P("s_load_dwordx8 s[20:27], s[0:1], 64")
        P("s_load_dwordx4 s[28:31], s[0:1], 96")
        if self.prof:
            P("s_memrealtime s[100:101]")
        t0, t1, t2, t3 = vT, vT+1, vT+2, vT+3
        P(f"v_and_b32 {v(vL)}, 63, v0")
        P(f"v_lshrrev_b32 {v(t0)}, 4, v0")
        P(f"v_and_b32 {v(t1)}, 15, v0")
        P(f"v_lshlrev_b32 {v(t1)}, 4, {v(t1)}")
        P(f"v_lshl_or_b32 {v(vWq)}, {v(t0)}, 16, {v(t1)}")
        P(f"v_and_b32 {v(t2)}, 7, v0")
        P(f"v_lshlrev_b32 {v(t2)}, 1, {v(t2)}")
        P(f"v_lshl_or_b32 {v(vXs)}, {v(t0)}, 4, {v(t2)}")
        P(f"v_lshlrev_b32 {v(vL16)}, 4, {v(vL)}")
        P(f"v_lshrrev_b32 {v(t0)}, 6, v0")
        P(f"v_lshl_or_b32 {v(vV)}, {v(t0)}, 12, {v(vL16)}")
        P(f"v_and_b32 {v(t2)}, 3, {v(vL)}")
        P(f"v_lshlrev_b32 {v(t2)}, 4, {v(t2)}")
        P(f"v_bfe_u32 {v(t3)}, {v(vL)}, 2, 2")
        P(f"v_lshl_or_b32 {v(t2)}, {v(t3)}, 8, {v(t2)}")
        P(f"v_lshrrev_b32 {v(t3)}, 4, {v(vL)}")
        P(f"v_lshl_or_b32 {v(t2)}, {v(t3)}, 6, {v(t2)}")
        P(f"v_lshl_or_b32 {v(vK)}, {v(t0)}, 12, {v(t2)}")
        P(f"v_readfirstlane_b32 s{sW}, {v(t0)}")
        P(f"s_and_b32 s{sP}, s2, 15")
        P(f"s_lshr_b32 s{sS}, s2, 4")
        P(f"s_and_b32 s{sT0}, s2, 7")
        P(f"s_lshr_b32 s{sT1}, s2, 6")
        P(f"s_and_b32 s{sT2}, s{sS}, 3")
        P(f"s_lshl_b32 s{sT3}, s{sT0}, 2")
        P(f"s_add_u32 s{sT3}, s{sT3}, s{sT2}")
        P(f"s_lshl_b32 s{sT3}, s{sT3}, 8")
        P(f"s_lshl_b32 s{sT4}, s{sT1}, 20")
        P(f"s_add_u32 s{sT3}, s{sT3}, s{sT4}")
        P(f"s_lshl_b32 s{sT4}, s{sT0}, 23")
        P(f"s_lshl_b32 s{sCNT}, s{sS}, {14 if o.get('ilv', 0) else 16}")
        P(f"s_add_u32 s{sT4}, s{sT4}, s{sCNT}")
        P(f"s_add_u32 s{sT4}, s{sT4}, 7340032")
        P(f"s_lshl_b32 s{sXOFF}, s{sT1}, 8")
        P(f"s_mov_b32 s{sR}, s2")
        P(f"s_lshl_b32 s{sSRC}, s{sP}, 3")
        P(f"s_lshr_b32 s{sCNT}, s{sS}, 1")
        P(f"s_add_u32 s{sSRC}, s{sSRC}, s{sCNT}")
        ILV = o.get("ilv", 0)
        for c, r in CONST.items():
            if c < 262144: P(f"s_mov_b32 s{r}, {c}")
        for b, n in ((S_WQ, 0x100000), (S_K, 0xC4000 if ILV else 65536), (S_V, 0xC4000 if ILV else 65536), (S_X, 1024), (S_WS, WS_REC), (S_WO, 65024), (S_G, 1024), (S_OUT, 1024)):
            P(f"s_mov_b32 s{b+2}, {n}")
            P(f"s_mov_b32 s{b+3}, 0x00020000")
        P("s_waitcnt lgkmcnt(0)")
        P(f"s_load_dword s{sE}, s[30:31], 0")
        if ILV:
            for c, r in CONST.items():
                if c >= 262144: P(f"s_mov_b32 s{r}, {c}")
        P(f"s_mov_b64 s[{S_X}:{S_X+1}], s[4:5]")
        P("s_bitcmp1_b32 s2, 3")
        P(f"s_cselect_b64 s[{S_WQ}:{S_WQ+1}], s[20:21], s[10:11]")
        P(f"s_cselect_b64 s[{S_K}:{S_K+1}], s[16:17], s[6:7]")
        P(f"s_cselect_b64 s[{S_V}:{S_V+1}], s[18:19], s[8:9]")
        P(f"s_cselect_b64 s[{S_WO}:{S_WO+1}], s[22:23], s[12:13]")
        P(f"s_mov_b64 s[{S_G}:{S_G+1}], s[24:25]")
        P(f"s_cmp_ge_u32 s{sR}, {NRED}")
        P("s_cbranch_scc1 L_GL_DONE")
        P(f"buffer_load_dwordx4 {v(GX,4)}, {v(vL16)}, {srd(S_X)}, 0 offen")
        P(f"buffer_load_dwordx4 {v(GX+4,4)}, {v(vL16)}, {srd(S_G)}, 0 offen")
        P.label("L_GL_DONE")
        P(f"buffer_load_ushort {v(vT+8-1)}, {v(vXs)}, {srd(S_X)}, s{sXOFF} offen")
        P(f"s_add_u32 s{S_WQ}, s{S_WQ}, s{sT3}")
        P(f"s_addc_u32 s{S_WQ+1}, s{S_WQ+1}, 0")
        for t in range(8):
            P(f"buffer_load_dwordx4 {v(W+4*t,4)}, {v(vWq)}, {srd(S_WQ)}, {soff(8192*t)} offen{nt}")
        P(f"s_add_u32 s{S_K}, s{S_K}, s{sT4}")
        P(f"s_addc_u32 s{S_K+1}, s{S_K+1}, 0")
        P(f"s_add_u32 s{S_V}, s{S_V}, s{sT4}")
        P(f"s_addc_u32 s{S_V+1}, s{S_V+1}, 0")
        P(f"s_mov_b64 s[{S_WS}:{S_WS+1}], s[30:31]")
        GQ = X + 32
        KST = 262144 if ILV else 16384
        GS = X + 32
        def kload(n): P(f"buffer_load_dwordx4 {v(K+4*n,4)}, {v(vK)}, {srd(S_K)}, {soff(KST*(n>>2))} offen offset:{1024*(n&3)}{nt}")
        def vload(n): P(f"buffer_load_dwordx4 {v(V+4*n,4)}, {v(vV)}, {srd(S_V)}, {soff(KST*(n>>2))} offen offset:{1024*(n&3)}{nt}")
        def woload(u): P(f"buffer_load_dwordx4 {v(W+4*u,4)}, {v(vWo)}, {srd(S_WO)}, {soff(4096*(u>>1))} offen offset:{256*(u&1)}{nt}")
        def qpload(i):
            for h in range(2):
                P(f"buffer_load_dwordx4 {v(W+8*i+4*h,4)}, {v(vV)}, {srd(S_WS)}, s{sQPLD} offen offset:{1024*h} sc1")
        def stload(i=0): P(f"buffer_load_dwordx4 {v(GS,4)}, {v(vL16)}, {srd(S_WS)}, s{sSTLD} offen sc1")
        FN = {"k": kload, "v": vload, "wo": woload, "qp": qpload, "st": stload}
        queue = [("xs", 0)] + [("wq", t) for t in range(8)]
        QP = [o.get("q1", 16), o.get("q2", 19)]
        WIN = o.get("win", 9)
        kv = [("k", n) for n in range(16)] + [("v", n) for n in range(16)]
        pend = []
        for j, e in enumerate(kv):
            for i, qp_ in enumerate(QP):
                if qp_ == j: pend.append(("qp", i))
            pend.append(e)
        pend += [("wo", u) for u in range(8)]
        def issue(n=1, win=None):
            for _ in range(n):
                if not pend: return
                if win is not None: P(f"s_waitcnt vmcnt({win-1})")
                kind, i = pend.pop(0)
                FN[kind](i); queue.append((kind, i))
                if kind == "qp": queue.append((kind + "x", i))
        def issue_until(op, win=None):
            while op not in queue: issue(1, win)
        def wait_for(op):
            if op[0] == "qp": op = ("qpx", op[1])
            idx = len(queue) - 1 - queue[::-1].index(op)
            P(f"s_waitcnt vmcnt({min(63, len(queue) - 1 - idx)})")
        NK0 = o.get("nk0", 2)
        issue(NK0)
        P(f"v_and_b32 {v(t1)}, 1, {v(vL)}")
        P(f"v_lshlrev_b32 {v(t1)}, 4, {v(t1)}")
        P(f"s_mov_b32 s{sT3}, 0xffff")
        P(f"v_lshlrev_b32_e64 {v(t1)}, {v(t1)}, s{sT3}")
        P(f"v_bfe_u32 {v(t2)}, {v(vL)}, 1, 3")
        for k in range(4):
            P(f"v_cmp_eq_u32 vcc, {k}, {v(t2)}")
            P(f"v_cndmask_b32 {v(vM+k)}, 0, {v(t1)}, vcc")
        for k in range(4):
            P(f"v_cmp_eq_u32 vcc, {4+k}, {v(t2)}")
            P(f"v_cndmask_b32 {v(vM2+k)}, 0, {v(t1)}, vcc")
        P(f"s_mov_b64 s[{S_OUT}:{S_OUT+1}], s[26:27]")
        P(f"s_and_b32 s{sT3}, s{sSRC}, 63")
        P(f"s_lshl_b32 s{sT3}, s{sT3}, 16")
        P(f"s_and_b32 s{sT4}, s{sS}, 1")
        P(f"s_lshl_b32 s{sT4}, s{sT4}, 9")
        P(f"s_add_u32 s{sT3}, s{sT3}, s{sT4}")
        P(f"s_add_u32 s{S_WO}, s{S_WO}, s{sT3}")
        P(f"s_addc_u32 s{S_WO+1}, s{S_WO+1}, 0")
        P(f"s_lshl_b32 s{sQPLD}, s{sP}, 14")
        P(f"s_add_u32 s{sQPLD}, s{sQPLD}, {QP_OFF}")
        P(f"s_lshl_b32 s{sT3}, s{sT2}, 12")
        P(f"s_lshl_b32 s{sT4}, s{sT1}, 9")
        P(f"s_add_u32 s{sQPST}, s{sQPLD}, s{sT3}")
        P(f"s_add_u32 s{sQPST}, s{sQPST}, s{sT4}")
        P(f"s_lshl_b32 s{sT3}, s{sP}, 2")
        P(f"s_add_u32 s{sT4}, s{sT3}, s{sW}")
        P(f"s_lshl_b32 s{sT4}, s{sT4}, 4")
        P(f"s_add_u32 s{sT4}, s{sT4}, s{sS}")
        P(f"s_mul_i32 s{sOPST}, s{sT4}, {OREC}")
        P(f"s_add_u32 s{sOPST}, s{sOPST}, {OP_OFF}")
        P(f"s_add_u32 s{sT4}, s{sT3}, s{sT1}")
        P(f"s_mul_i32 s{sSTLD}, s{sT4}, {16*OREC}")
        P(f"s_add_u32 s{sSTLD}, s{sSTLD}, {OP_OFF}")
        P(f"s_bfe_u32 s{sT4}, s{sS}, {1 | (1 << 16)}")
        P(f"s_lshl_b32 s{sT4}, s{sT4}, 2")
        P(f"s_add_u32 s{sT4}, s{sT4}, s{sW}")
        P(f"s_lshl_b32 s{sT4}, s{sT4}, 6")
        P(f"s_add_u32 s{sOPLD}, s{sSTLD}, s{sT4}")
        P(f"s_add_u32 s{sSTLD}, s{sSTLD}, 512")
        P(f"s_and_b32 s{sT4}, s{sS}, 1")
        P(f"s_lshl_b32 s{sFINST}, s{sT4}, 10")
        P(f"s_lshl_b32 s{sT4}, s{sSRC}, 11")
        P(f"s_add_u32 s{sFINST}, s{sFINST}, s{sT4}")
        P(f"s_add_u32 s{sFINST}, s{sFINST}, {FIN_OFF}")
        P(f"s_lshl_b32 s{sT4}, s{sR}, 7")
        P(f"s_lshl_b32 s{sFINLD}, s{sW}, 16")
        P(f"s_add_u32 s{sFINLD}, s{sFINLD}, s{sT4}")
        P(f"s_add_u32 s{sFINLD}, s{sFINLD}, {FIN_OFF}")
        P(f"s_mov_b32 s{sMASK}, 0xffffff00")
        P(f"s_mov_b32 s{sLOG2E}, 0x3fb8aa3b")
        P(f"s_mov_b32 s{sSCL}, 0x3db504f3")
        P(f"s_mov_b32 s{sSCL+1}, 0x3db504f3")
        P(f"s_mov_b32 s{sHI}, 0xffff0000")
        P(f"s_mov_b32 s{sCNT}, 20000")
        P(f"v_mov_b32 {v(t0)}, s{sW}")
        P(f"v_and_b32 {v(t1)}, 15, {v(vL)}")
        P(f"v_lshlrev_b32 {v(t1)}, 5, {v(t1)}")
        P(f"v_lshrrev_b32 {v(t2)}, 4, {v(vL)}")
        P(f"v_lshl_or_b32 {v(t1)}, {v(t2)}, 4, {v(t1)}")
        P(f"v_lshl_or_b32 {v(vQa)}, {v(t0)}, 9, {v(t1)}")
        P(f"v_and_b32 {v(t1)}, 31, {v(vL)}")
        P(f"v_lshlrev_b32 {v(t1)}, 3, {v(t1)}")
        P(f"v_lshrrev_b32 {v(t3)}, 5, {v(vL)}")
        P(f"v_lshl_or_b32 {v(t1)}, {v(t3)}, 1, {v(t1)}")
        P(f"s_mul_i32 s{sT3}, s{sW}, 272")
        P(f"s_add_u32 s{sT3}, s{sT3}, {L_QL}")
        P(f"v_add_u32 {v(vQw)}, s{sT3}, {v(t1)}")
        P(f"v_and_b32 {v(t1)}, 3, {v(vL)}")
        P(f"v_mul_u32_u24 {v(t3)}, 272, {v(t1)}")
        P(f"v_lshrrev_b32 {v(vQr)}, 2, {v(vL)}")
        P(f"v_lshl_add_u32 {v(vQr)}, {v(vQr)}, 4, {v(t3)}")
        P(f"v_add_u32 {v(vQr)}, {L_QL}, {v(vQr)}")
        P(f"v_lshlrev_b32 {v(vMx)}, 2, {v(t1)}")
        P(f"v_add_u32 {v(vMx)}, {L_MX}, {v(vMx)}")
        P(f"s_lshl_b32 s{sT3}, s{sW}, 2")
        P(f"s_add_u32 s{sT3}, s{sT3}, {L_LS}")
        P(f"v_lshlrev_b32 {v(vLs)}, 4, {v(t1)}")
        P(f"v_add_u32 {v(vLs)}, s{sT3}, {v(vLs)}")
        P(f"v_mul_u32_u24 {v(t3)}, {ORED_H}, {v(t1)}")
        P(f"v_lshl_add_u32 {v(t3)}, {v(t2)}, 7, {v(t3)}")
        P(f"v_bfe_u32 {v(t1)}, {v(vL)}, 2, 2")
        P(f"v_lshl_add_u32 {v(t3)}, {v(t1)}, 3, {v(t3)}")
        P(f"s_mul_i32 s{sT3}, s{sW}, {ORED_W}")
        P(f"s_add_u32 s{sT3}, s{sT3}, {L_ORED}")
        P(f"v_add_u32 {v(vOw)}, s{sT3}, {v(t3)}")
        P(f"s_mul_i32 s{sT3}, s{sW}, {ORED_H}")
        P(f"s_add_u32 s{sT3}, s{sT3}, {L_ORED}")
        P(f"v_add_u32 {v(vOr)}, s{sT3}, {v(vL16)}")
        P(f"v_and_b32 {v(t1)}, 1, {v(t2)}")
        P(f"v_lshlrev_b32 {v(t1)}, 1, {v(t1)}")
        P(f"v_lshrrev_b32 {v(t3)}, 1, {v(t2)}")
        P(f"v_or_b32 {v(t1)}, {v(t1)}, {v(t3)}")
        P(f"v_and_b32 {v(t3)}, 15, {v(vL)}")
        P(f"v_lshlrev_b32 {v(t3)}, 4, {v(t3)}")
        P(f"v_lshl_or_b32 {v(t3)}, {v(t1)}, 10, {v(t3)}")
        P(f"v_lshl_or_b32 {v(vWo)}, {v(t0)}, 14, {v(t3)}")
        P(f"v_mov_b32 {v(t1)}, 0xff800000")
        P(f"ds_write_b32 {v(vMx)}, {v(t1)}")
        XS = vT + 7
        wait_for(("xs", 0))
        P(f"v_lshl_or_b32 {v(XS)}, {v(XS)}, 16, {v(XS)}")
        for t in range(8):
            for k in range(4):
                P(f"v_and_b32_dpp {v(X+4*t+k)}, {v(XS)}, {v(vM+k)} row_newbcast:{t} row_mask:0xf bank_mask:0xf")
        D = vT + 4
        for t in range(8):
            wait_for(("wq", t))
            P(f"v_mfma_f32_16x16x32_bf16 {v(D,4)}, {v(X+4*t,4)}, {v(W+4*t,4)}, {'0' if t==0 else v(D,4)}")
            issue(1)
        self.stamp("wq_done")
        P("s_mov_b32 exec_hi, 0")
        P(f"ds_write_b128 {v(vQa)}, {v(D,4)} offset:{L_QRED}")
        P("s_mov_b32 exec_hi, -1")
        P("s_waitcnt lgkmcnt(0)")
        P("s_barrier")
        P(f"s_add_u32 s{sE}, s{sE}, 1")
        P(f"s_and_b32 s{sT3}, s{sE}, 0xff")
        P(f"v_mov_b32 {v(vTau)}, s{sT3}")
        P(f"s_cmp_lg_u32 s{sW}, 0")
        P("s_cbranch_scc1 L_QPUB_DONE")
        P("s_mov_b32 exec_hi, 0")
        for k in range(4):
            P(f"ds_read_b128 {v(X+4*k,4)}, {v(vL16)} offset:{L_QRED+512*k}")
        P("s_waitcnt lgkmcnt(0)")
        self.sum4(X)
        for k in range(4):
            P(f"v_and_or_b32 {v(X+k)}, {v(X+k)}, s{sMASK}, {v(vTau)}")
        P(f"buffer_store_dwordx4 {v(X,4)}, {v(vL16)}, {srd(S_WS)}, s{sQPST} offen sc1")
        if DUAL: P(f"buffer_store_dwordx4 {v(X,4)}, {v(vL16)}, {srd(S_WS)}, s{sQPST} offen")
        P("s_mov_b32 exec_hi, -1")
        P.label("L_QPUB_DONE")
        P("s_nop 1")
        self.stamp("q_pub")
        P(f"s_cmp_ge_u32 s{sR}, {NRED}")
        P("s_cbranch_scc1 L_GATE_DONE")
        self.gate()
        P.label("L_GATE_DONE")
        BS = X + 16
        for k in range(16):
            P(f"v_mov_b32 {v(BS+k)}, 0")
        sIss = sT0
        issue_until(("qp", 0), WIN)
        issue(o.get("n1", 7), WIN)
        assert ("qp", 1) in queue
        def qred(i):
            B = W + 8 * i
            P(f"v_pk_add_f32 {v(GQ,2)}, {v(B,2)}, {v(B+4,2)}")
            P(f"v_pk_add_f32 {v(GQ+2,2)}, {v(B+2,2)}, {v(B+6,2)}")
        NB = o.get("nb", 3)
        P(f"s_mov_b32 s{sIss}, 0")
        wait_for(("k", 15))
        if self.prof and o.get("kst", 1): self.stamp("k15")
        wait_for(("qp", 0))
        self.tagcheck(list(range(W, W+8)), vT)
        P("s_cbranch_vccz L_Q0")
        saved_q = list(queue); saved_p = list(pend)
        if self.prof: P(f"s_sub_u32 s{sCNT}, s{sCNT}, 1")
        qpload(0); queue += [("qp", 2), ("qpx", 2)]
        issue(NB, WIN + 2)
        P(f"s_mov_b32 s{sIss}, 1")
        wait_for(("qp", 1))
        self.tagcheck(list(range(W+8, W+16)), vT)
        P("s_cbranch_vccz L_Q1")
        if self.prof: P(f"s_sub_u32 s{sCNT}, s{sCNT}, 1")
        qpload(1); queue += [("qp", 3), ("qpx", 3)]
        issue(NB, WIN + 2)
        P(f"s_mov_b32 s{sIss}, 2")
        wait_for(("qp", 2))
        self.tagcheck(list(range(W, W+8)), vT)
        P("s_cbranch_vccz L_Q0")
        if self.prof: P(f"s_sub_u32 s{sCNT}, s{sCNT}, 1")
        wait_for(("qp", 3))
        P.label("L_QCHK")
        self.tagcheck(list(range(W+8, W+16)), vT)
        P("s_cbranch_vccz L_Q1")
        P(f"s_sub_u32 s{sCNT}, s{sCNT}, 1")
        P("s_cbranch_scc1 L_Q1")
        qpload(1)
        P("s_waitcnt vmcnt(0)")
        P("s_branch L_QCHK")
        P.label("L_Q0")
        qred(0)
        P("s_branch L_QC")
        P.label("L_Q1")
        qred(1)
        P.label("L_QC")
        queue[:] = saved_q; pend[:] = saved_p
        def guarded(level, n, lab):
            P(f"s_cmp_ge_u32 s{sIss}, {level}")
            P(f"s_cbranch_scc1 {lab}")
            issue(n)
            P.label(lab)
        self.stamp("q_got"); self.snap(0)
        P(f"v_permlane32_swap_b32 {v(GQ)}, {v(GQ+1)}")
        P(f"v_permlane32_swap_b32 {v(GQ+2)}, {v(GQ+3)}")
        P(f"v_add_f32 {v(GQ)}, {v(GQ)}, {v(GQ+1)}")
        P(f"v_add_f32 {v(GQ+2)}, {v(GQ+2)}, {v(GQ+3)}")
        P(f"v_cvt_pk_bf16_f32 {v(GQ)}, {v(GQ)}, {v(GQ+2)}")
        P(f"ds_write_b16 {v(vQw)}, {v(GQ)}")
        P(f"ds_write_b16_d16_hi {v(vQw)}, {v(GQ)} offset:4")
        P("s_waitcnt lgkmcnt(0)")
        P("s_barrier")
        BQ = vT + 4
        P(f"ds_read_b128 {v(BQ,4)}, {v(vQr)}")
        guarded(1, NB, "L_B1")
        P("s_waitcnt lgkmcnt(0)")
        DS = X
        S = X + 32
        def mf(n): P(f"v_mfma_f32_16x16x32_bf16 {v(DS+4*(n&3),4)}, {v(K+4*n,4)}, {v(BQ,4)}, 0")
        def fold(n):
            g, u = n >> 2, n & 3
            for b in range(4):
                src = DS + 4*(n&3) + b
                if b == 0:
                    P(f"v_mov_b32_dpp {v(S+g)}, {v(src)} {ror(4*(u-b))} row_mask:0xf bank_mask:{1<<u:#x}")
                else:
                    P(f"v_add_f32_dpp {v(S+g)}, {v(src)}, {v(S+g)} {ror(4*(u-b))} row_mask:0xf bank_mask:{1<<u:#x}")
        mf(0); mf(1); mf(2)
        for n in range(16):
            fold(n)
            if n + 3 < 16: mf(n + 3)
        guarded(2, NB, "L_B2")
        R = X + 36
        def rnd():
            P(f"v_cvt_pk_bf16_f32 {v(R)}, {v(S)}, {v(S+1)}")
            P(f"v_cvt_pk_bf16_f32 {v(R+1)}, {v(S+2)}, {v(S+3)}")
            P(f"v_lshlrev_b32 {v(S)}, 16, {v(R)}")
            P(f"v_and_b32 {v(S+1)}, s{sHI}, {v(R)}")
            P(f"v_lshlrev_b32 {v(S+2)}, 16, {v(R+1)}")
            P(f"v_and_b32 {v(S+3)}, s{sHI}, {v(R+1)}")
        rnd()
        P(f"v_pk_mul_f32 {v(S,2)}, {v(S,2)}, s[{sSCL}:{sSCL+1}]")
        P(f"v_pk_mul_f32 {v(S+2,2)}, {v(S+2,2)}, s[{sSCL}:{sSCL+1}]")
        rnd()
        Mx = X + 40
        P(f"v_max3_f32 {v(Mx)}, {v(S)}, {v(S+1)}, {v(S+2)}")
        P(f"v_max_f32 {v(Mx)}, {v(Mx)}, {v(S+3)}")
        P(f"v_max_f32_dpp {v(Mx)}, {v(Mx)}, {v(Mx)} row_ror:4 row_mask:0xf bank_mask:0xf")
        P(f"v_max_f32_dpp {v(Mx)}, {v(Mx)}, {v(Mx)} row_ror:8 row_mask:0xf bank_mask:0xf")
        P(f"ds_max_f32 {v(vMx)}, {v(Mx)}")
        P("s_waitcnt lgkmcnt(0)")
        P("s_barrier")
        P(f"ds_read_b32 {v(Mx)}, {v(vMx)}")
        P("s_waitcnt lgkmcnt(0)")
        P(f"v_mul_f32 {v(R)}, s{sLOG2E}, {v(Mx)}")
        for g in range(4):
            P(f"v_fma_f32 {v(S+g)}, {v(S+g)}, s{sLOG2E}, -{v(R)}")
        for g in range(4):
            P(f"v_exp_f32 {v(S+g)}, {v(S+g)}")
        PL = X + 44; PH = X + 36
        for g in range(4):
            P(f"v_cvt_pk_bf16_f32 {v(PL+g)}, {v(S+g)}, 0")
            P(f"v_cvt_pk_bf16_f32 {v(PH+g)}, 0, {v(S+g)}")
        P(f"v_pk_add_f32 {v(S,2)}, {v(S,2)}, {v(S+2,2)}")
        P(f"v_add_f32 {v(S)}, {v(S)}, {v(S+1)}")
        P(f"v_add_f32_dpp {v(S)}, {v(S)}, {v(S)} row_ror:4 row_mask:0xf bank_mask:0xf")
        P(f"v_add_f32_dpp {v(S)}, {v(S)}, {v(S)} row_ror:8 row_mask:0xf bank_mask:0xf")
        P(f"v_mov_b32 {v(S+1)}, {v(S)}")
        P(f"v_permlane16_swap_b32 {v(S)}, {v(S+1)}")
        P(f"v_add_f32 {v(S)}, {v(S)}, {v(S+1)}")
        P(f"v_mov_b32 {v(S+1)}, {v(S)}")
        P(f"v_permlane32_swap_b32 {v(S)}, {v(S+1)}")
        P(f"v_add_f32 {v(S)}, {v(S)}, {v(S+1)}")
        P("s_mov_b64 exec, 15")
        P(f"ds_write_b32 {v(vLs)}, {v(S)}")
        P("s_mov_b64 exec, -1")
        P(f"v_lshrrev_b32 {v(vOG)}, 2, {v(vL)}")
        P(f"v_mul_u32_u24 {v(vOG)}, {OREC}, {v(vOG)}")
        P(f"v_and_b32 {v(vT)}, 3, {v(vL)}")
        P(f"v_lshl_add_u32 {v(vOG)}, {v(vT)}, 4, {v(vOG)}")
        P(f"v_lshrrev_b32 {v(vF)}, 3, {v(vL)}")
        P(f"v_lshlrev_b32 {v(vF)}, 11, {v(vF)}")
        P(f"v_and_b32 {v(vT)}, 7, {v(vL)}")
        P(f"v_lshl_add_u32 {v(vF)}, {v(vT)}, 4, {v(vF)}")
        for i in range(1, 4):
            P(f"v_add_u32 {v(vF+i)}, {16384*i}, {v(vF)}")
        self.stamp("sm_done")
        ACC = X + 48
        issue(o.get("pre", 1))
        STN = o.get("stn", 8)
        for n in range(16):
            g, u0 = n >> 2, n & 3
            for m in range(2):
                bs = BS + 4 * ((2*n + m) & 3)
                src = (PL if m == 0 else PH) + g
                for u in range(4):
                    P(f"v_mov_b32_dpp {v(bs+u)}, {v(src)} {ror(4*(u-u0))} row_mask:0xf bank_mask:{1<<u:#x}")
                if m == 0:
                    issue_until(("v", n))
                    wait_for(("v", n))
                P(f"v_mfma_f32_16x16x32_bf16 {v(ACC+4*m,4)}, {v(V+4*n,4)}, {v(bs,4)}, {'0' if n==0 else v(ACC+4*m,4)}")
            issue(1)
        issue(99)
        self.stamp("pv_done")
        for r in range(4):
            P(f"ds_write2_b32 {v(vOw)}, {v(ACC+r)}, {v(ACC+4+r)} offset0:{8*r} offset1:{8*r+1}")
        P("s_waitcnt lgkmcnt(0)")
        P("s_barrier")
        O = X
        TL = X + 16; TM = X + 20
        P("s_mov_b32 exec_hi, 0xff")
        for k in range(4):
            P(f"ds_read_b128 {v(O+4*k,4)}, {v(vOr)} offset:{ORED_W*k}")
        P(f"s_lshl_b32 s{sT3}, s{sW}, 4")
        P(f"v_mov_b32 {v(vT+3)}, s{sT3}")
        P(f"s_lshl_b32 s{sT3}, s{sW}, 2")
        P(f"v_mov_b32 {v(vT+4)}, s{sT3}")
        P(f"ds_read_b128 {v(TL,4)}, {v(vT+3)} offset:{L_LS}")
        P(f"ds_read_b32 {v(TM)}, {v(vT+4)} offset:{L_MX}")
        P("s_waitcnt lgkmcnt(2)")
        self.sum4(O)
        for k in range(4):
            P(f"v_and_or_b32 {v(O+k)}, {v(O+k)}, s{sMASK}, {v(vTau)}")
        P("s_waitcnt lgkmcnt(0)")
        P(f"v_pk_add_f32 {v(TL,2)}, {v(TL,2)}, {v(TL+2,2)}")
        P("s_mov_b32 exec_lo, 0")
        P(f"v_add_f32 {v(TL)}, {v(TL)}, {v(TL+1)}")
        P(f"v_or_b32 {v(O)}, {v(TM)}, {v(vTau)}")
        P(f"v_mov_b32 {v(O+2)}, {v(vTau)}")
        P(f"v_mov_b32 {v(O+3)}, {v(vTau)}")
        P(f"v_and_or_b32 {v(O+1)}, {v(TL)}, s{sMASK}, {v(vTau)}")
        P("s_mov_b32 exec_lo, -1")
        P(f"buffer_store_dwordx4 {v(O,4)}, {v(vL16)}, {srd(S_WS)}, s{sOPST} offen sc1")
        if DUAL: P(f"buffer_store_dwordx4 {v(O,4)}, {v(vL16)}, {srd(S_WS)}, s{sOPST} offen")
        P("s_mov_b32 exec_hi, -1")
        GA = X + 32; GB = X + 40; GR = X + 48
        def ogload(B):
            P(f"buffer_load_dwordx4 {v(B,4)}, {v(vOG)}, {srd(S_WS)}, s{sSTLD} offen sc1")
            P(f"buffer_load_dwordx4 {v(B+4,4)}, {v(vOG)}, {srd(S_WS)}, s{sOPLD} offen sc1")
        ogload(GA)
        self.stamp("o_pub")
        P("s_waitcnt vmcnt(4)" if DUAL else "s_waitcnt vmcnt(3)")
        self.stamp("st_got")
        ogload(GB)
        P.label("L_OCHK")
        P("s_waitcnt vmcnt(2)")
        self.tagcheck(list(range(GA, GA+8)), vT)
        P("s_cbranch_vccz L_OA")
        ogload(GA)
        P("s_waitcnt vmcnt(2)")
        self.tagcheck(list(range(GB, GB+8)), vT)
        P("s_cbranch_vccz L_OB")
        ogload(GB)
        P(f"s_sub_u32 s{sCNT}, s{sCNT}, 1")
        P("s_cbranch_scc0 L_OCHK")
        def post(B):
            GS = B; GO = B + 4
            a, b_ = vT, vT+1
            P(f"v_max_f32_dpp {v(a)}, {v(GS)}, {v(GS)} row_ror:4 row_mask:0xf bank_mask:0xf")
            P(f"v_max_f32_dpp {v(a)}, {v(a)}, {v(a)} row_ror:8 row_mask:0xf bank_mask:0xf")
            P(f"v_mov_b32 {v(b_)}, {v(a)}")
            P(f"v_permlane16_swap_b32 {v(a)}, {v(b_)}")
            P(f"v_max_f32 {v(a)}, {v(a)}, {v(b_)}")
            P(f"v_mov_b32 {v(b_)}, {v(a)}")
            P(f"v_permlane32_swap_b32 {v(a)}, {v(b_)}")
            P(f"v_max_f32 {v(a)}, {v(a)}, {v(b_)}")
            P(f"v_mul_f32 {v(a)}, s{sLOG2E}, {v(a)}")
            P(f"v_fma_f32 {v(GS)}, {v(GS)}, s{sLOG2E}, -{v(a)}")
            P(f"v_exp_f32 {v(GS)}, {v(GS)}")
            P(f"v_mul_f32 {v(a)}, {v(GS)}, {v(GS+1)}")
            P(f"v_mov_b32 {v(GS+1)}, {v(GS)}")
            P(f"v_pk_mul_f32 {v(GR,2)}, {v(GO,2)}, {v(GS,2)}")
            P(f"v_pk_mul_f32 {v(GR+2,2)}, {v(GO+2,2)}, {v(GS,2)}")
            P(f"v_add_f32_dpp {v(a)}, {v(a)}, {v(a)} row_ror:4 row_mask:0xf bank_mask:0xf")
        P.label("L_OB")
        post(GB)
        P("s_branch L_OOK")
        P.label("L_OA")
        post(GA)
        P.label("L_OOK")
        self.stamp("o_got"); self.snap(1); self.snap(2)
        a, b_ = vT, vT+1
        GO = GR
        P(f"v_permlane32_swap_b32 {v(GO)}, {v(GO+1)}")
        P(f"v_add_f32_dpp {v(a)}, {v(a)}, {v(a)} row_ror:8 row_mask:0xf bank_mask:0xf")
        P(f"v_permlane32_swap_b32 {v(GO+2)}, {v(GO+3)}")
        P(f"v_mov_b32 {v(b_)}, {v(a)}")
        P(f"v_add_f32 {v(GO)}, {v(GO)}, {v(GO+1)}")
        P(f"v_permlane16_swap_b32 {v(a)}, {v(b_)}")
        P(f"v_add_f32 {v(GO+2)}, {v(GO+2)}, {v(GO+3)}")
        P(f"v_add_f32 {v(a)}, {v(a)}, {v(b_)}")
        P(f"v_permlane16_swap_b32 {v(GO)}, {v(GO+2)}")
        P(f"v_mov_b32 {v(b_)}, {v(a)}")
        P(f"v_add_f32 {v(GO)}, {v(GO)}, {v(GO+2)}")
        P(f"v_permlane32_swap_b32 {v(a)}, {v(b_)}")
        P(f"v_add_f32_dpp {v(GO)}, {v(GO)}, {v(GO)} row_ror:4 row_mask:0xf bank_mask:0xf")
        P(f"v_add_f32 {v(a)}, {v(a)}, {v(b_)}")
        P(f"v_add_f32_dpp {v(GO)}, {v(GO)}, {v(GO)} row_ror:8 row_mask:0xf bank_mask:0xf")
        P(f"v_rcp_f32 {v(a)}, {v(a)}")
        P(f"v_mul_f32 {v(GO)}, {v(GO)}, {v(a)}")
        P(f"v_cvt_pk_bf16_f32 {v(GO)}, {v(GO)}, {v(GO)}")
        F = K; FB = K + 16; FR = X + 48
        def fload(B):
            for i in range(4):
                P(f"buffer_load_dwordx4 {v(B+4*i,4)}, {v(vF+i)}, {srd(S_WS)}, s{sFINLD} offen sc1")
        if o.get("fearly", 1):
            P(f"s_cmp_ge_u32 s{sR}, {NRED}")
            P("s_cbranch_scc1 L_FE_DONE")
            fload(F)
            P.label("L_FE_DONE")
        SEL = X
        D2 = vT + 4
        for u in range(8):
            mk = vM if (u & 1) == 0 else vM2
            for k in range(4):
                P(f"v_and_b32_dpp {v(SEL+4*u+k)}, {v(GO)}, {v(mk+k)} row_newbcast:{u>>1} row_mask:0xf bank_mask:0xf")
            if u >= 1:
                P(f"v_mfma_f32_16x16x32_bf16 {v(D2,4)}, {v(SEL+4*(u-1),4)}, {v(W+4*(u-1),4)}, {'0' if u==1 else v(D2,4)}")
        P(f"v_mfma_f32_16x16x32_bf16 {v(D2,4)}, {v(SEL+28,4)}, {v(W+28,4)}, {v(D2,4)}")
        P(f"v_lshrrev_b32 {v(vT)}, 5, {v(vL)}")
        P(f"v_lshlrev_b32 {v(vT)}, 9, {v(vT)}")
        P(f"v_and_b32 {v(vT+1)}, 15, {v(vL)}")
        P(f"v_lshl_or_b32 {v(vT)}, {v(vT+1)}, 5, {v(vT)}")
        P(f"v_bfe_u32 {v(vT+1)}, {v(vL)}, 4, 1")
        P(f"v_lshl_or_b32 {v(vT)}, {v(vT+1)}, 4, {v(vT)}")
        P(f"s_lshl_b32 s{sT3}, s{sW}, 10")
        P(f"v_add_u32 {v(vT)}, s{sT3}, {v(vT)}")
        P(f"ds_write_b128 {v(vT)}, {v(D2,4)} offset:{L_QRED}")
        P("s_waitcnt lgkmcnt(0)")
        P("s_barrier")
        self.stamp("wo_done")
        P(f"s_cmp_lg_u32 s{sW}, 0")
        P("s_cbranch_scc1 L_APUB_DONE")
        for k in range(4):
            P(f"ds_read_b128 {v(X+4*k,4)}, {v(vL16)} offset:{L_QRED+1024*k}")
        P("s_waitcnt lgkmcnt(0)")
        self.sum4(X)
        for k in range(4):
            P(f"v_and_or_b32 {v(X+k)}, {v(X+k)}, s{sMASK}, {v(vTau)}")
        P(f"buffer_store_dwordx4 {v(X,4)}, {v(vL16)}, {srd(S_WS)}, s{sFINST} offen sc1")
        P.label("L_APUB_DONE")
        P("s_nop 1")
        self.stamp("a_pub")
        P(f"s_cmp_ge_u32 s{sR}, {NRED}")
        P("s_cbranch_scc1 L_FIN_DONE")
        if not o.get("fearly", 1): fload(F)
        fload(FB)
        P(f"s_cmp_lt_u32 s{sW}, 2")
        P("s_cbranch_scc1 L_FCO")
        P(f"v_mov_b32 {v(vCA)}, {v(vCB)}")
        P.label("L_FCO")
        P(f"v_and_b32 {v(vT+1)}, 7, {v(vL)}")
        P(f"v_lshlrev_b32 {v(vT+1)}, 4, {v(vT+1)}")
        P(f"v_bfe_u32 {v(vT+2)}, {v(vWo)}, 10, 2")
        P(f"v_lshl_add_u32 {v(vT+1)}, {v(vT+2)}, 2, {v(vT+1)}")
        P(f"s_lshl_b32 s{sT3}, s{sW}, 7")
        P(f"v_add_u32 {v(vT+1)}, s{sT3}, {v(vT+1)}")
        P(f"v_lshlrev_b32 {v(vT+2)}, 2, {v(vL)}")
        P(f"v_lshlrev_b32 {v(vT+3)}, 1, {v(vL)}")
        P.label("L_FG")
        P("s_waitcnt vmcnt(4)")
        self.tagcheck(list(range(F, F+16)), vT)
        P("s_cbranch_vccz L_FA")
        fload(F)
        P("s_waitcnt vmcnt(4)")
        self.tagcheck(list(range(FB, FB+16)), vT)
        P("s_cbranch_vccz L_FB")
        fload(FB)
        P(f"s_sub_u32 s{sCNT}, s{sCNT}, 1")
        P("s_cbranch_scc0 L_FG")
        def fpost(B):
            P(f"v_pk_add_f32 {v(B,2)}, {v(B,2)}, {v(B+4,2)}")
            P(f"v_pk_add_f32 {v(B+2,2)}, {v(B+2,2)}, {v(B+6,2)}")
            P(f"v_pk_add_f32 {v(B+8,2)}, {v(B+8,2)}, {v(B+12,2)}")
            P(f"v_pk_add_f32 {v(B+10,2)}, {v(B+10,2)}, {v(B+14,2)}")
            P(f"v_pk_add_f32 {v(FR,2)}, {v(B,2)}, {v(B+8,2)}")
            P(f"v_pk_add_f32 {v(FR+2,2)}, {v(B+2,2)}, {v(B+10,2)}")
        P.label("L_FB")
        fpost(FB)
        P("s_branch L_FOK")
        P.label("L_FA")
        fpost(F)
        P.label("L_FOK")
        self.stamp("f_got")
        F = FR
        P(f"v_permlane32_swap_b32 {v(F)}, {v(F+1)}")
        P(f"v_permlane32_swap_b32 {v(F+2)}, {v(F+3)}")
        P(f"v_add_f32 {v(F)}, {v(F)}, {v(F+1)}")
        P(f"v_add_f32 {v(F+2)}, {v(F+2)}, {v(F+3)}")
        P(f"v_permlane16_swap_b32 {v(F)}, {v(F+2)}")
        P(f"v_add_f32 {v(F)}, {v(F)}, {v(F+2)}")
        P(f"v_add_f32_dpp {v(F)}, {v(F)}, {v(F)} row_ror:8 row_mask:0xf bank_mask:0xf")
        P(f"v_mul_f32 {v(F)}, {v(F)}, {v(vCA)}")
        P(f"ds_write_b32 {v(vT+1)}, {v(F)} offset:{L_F}")
        P("s_waitcnt lgkmcnt(0)")
        P("s_barrier")
        P(f"s_cmp_lg_u32 s{sW}, 0")
        P("s_cbranch_scc1 L_FIN_DONE")
        P("s_mov_b32 exec_hi, 0")
        P(f"ds_read2_b32 {v(F,2)}, {v(vT+2)} offset0:{L_F//4} offset1:{L_F//4+32}") if False else None
        P(f"v_add_u32 {v(vT+2)}, {L_F}, {v(vT+2)}")
        P(f"ds_read2_b32 {v(F,2)}, {v(vT+2)} offset0:0 offset1:32")
        P(f"ds_read2_b32 {v(F+2,2)}, {v(vT+2)} offset0:64 offset1:96")
        P(f"s_lshl_b32 s{sT4}, s{sR}, 6")
        P("s_waitcnt lgkmcnt(0)")
        P(f"v_pk_add_f32 {v(F,2)}, {v(F,2)}, {v(F+2,2)}")
        P(f"v_add_f32 {v(F)}, {v(F)}, {v(F+1)}")
        P(f"v_cvt_pk_bf16_f32 {v(F)}, {v(F)}, {v(F)}")
        P(f"buffer_store_short {v(F)}, {v(vT+3)}, {srd(S_OUT)}, s{sT4} offen")
        P(f"s_cmp_lg_u32 s{sR}, 0")
        P("s_cbranch_scc1 L_FIN_DONE")
        P(f"v_mov_b32 {v(vT+2)}, s{sE}")
        P(f"v_mov_b32 {v(vT+3)}, 0")
        P("s_mov_b64 exec, 1")
        P(f"buffer_store_dword {v(vT+2)}, {v(vT+3)}, {srd(S_WS)}, 0 offen sc1")
        P.label("L_FIN_DONE")
        P("s_mov_b64 exec, -1")
        self.stamp("end")
        if self.prof:
            P("s_waitcnt lgkmcnt(0)")
            P(f"s_lshl_b32 s{sT3}, s2, 2")
            P(f"s_add_u32 s{sT3}, s{sT3}, s{sW}")
            P(f"s_lshl_b32 s{sT3}, s{sT3}, 7")
            P(f"s_add_u32 s{sT3}, s{sT3}, {PROF_OFF}")
            P("s_getreg_b32 s59, hwreg(HW_REG_HW_ID)")
            P(f"v_mov_b32 {v(X)}, s100")
            for i in range(15):
                P(f"v_mov_b32 {v(X+1+i)}, " + (f"s{4+2*i}" if i < self.nst else f"s{sCNT}"))
            for i in range(4):
                P(f"v_mov_b32 {v(X+16+i)}, s{56+i}")
            P(f"v_mov_b32 {v(vT)}, 0")
            P("s_mov_b64 exec, 1")
            for k in range(5):
                P(f"buffer_store_dwordx4 {v(X+4*k,4)}, {v(vT)}, {srd(S_WS)}, s{sT3} offen offset:{16*k}")
        P.label("L_END")
        P("s_endpgm")

    def sum4(self, B):
        P = self.P
        P(f"v_pk_add_f32 {v(B,2)}, {v(B,2)}, {v(B+4,2)}")
        P(f"v_pk_add_f32 {v(B+2,2)}, {v(B+2,2)}, {v(B+6,2)}")
        P(f"v_pk_add_f32 {v(B+8,2)}, {v(B+8,2)}, {v(B+12,2)}")
        P(f"v_pk_add_f32 {v(B+10,2)}, {v(B+10,2)}, {v(B+14,2)}")
        P(f"v_pk_add_f32 {v(B,2)}, {v(B,2)}, {v(B+8,2)}")
        P(f"v_pk_add_f32 {v(B+2,2)}, {v(B+2,2)}, {v(B+10,2)}")

    def gate(self):
        P = self.P
        A = GX; B = GX + 4; T = V + 40
        acc = T + 6
        P(f"v_mov_b32 {v(acc)}, 0")
        for k in range(4):
            P(f"v_lshlrev_b32 {v(T)}, 16, {v(A+k)}")
            P(f"v_and_b32 {v(T+1)}, s{sHI}, {v(A+k)}")
            P(f"v_lshlrev_b32 {v(T+2)}, 16, {v(B+k)}")
            P(f"v_and_b32 {v(T+3)}, s{sHI}, {v(B+k)}")
            P(f"v_pk_mul_f32 {v(T,2)}, {v(T,2)}, {v(T+2,2)}")
            P(f"v_cvt_pk_bf16_f32 {v(T+4)}, {v(T)}, {v(T+1)}")
            P(f"v_lshlrev_b32 {v(T)}, 16, {v(T+4)}")
            P(f"v_and_b32 {v(T+1)}, s{sHI}, {v(T+4)}")
            P(f"v_add_f32 {v(acc)}, {v(acc)}, {v(T)}")
            P(f"v_add_f32 {v(acc)}, {v(acc)}, {v(T+1)}")
        for n in (8, 4, 2, 1):
            P(f"v_add_f32_dpp {v(acc)}, {v(acc)}, {v(acc)} row_ror:{n} row_mask:0xf bank_mask:0xf")
        P(f"v_mov_b32 {v(T)}, {v(acc)}")
        P(f"v_permlane16_swap_b32 {v(acc)}, {v(T)}")
        P(f"v_add_f32 {v(acc)}, {v(acc)}, {v(T)}")
        P(f"v_mov_b32 {v(T)}, {v(acc)}")
        P(f"v_permlane32_swap_b32 {v(acc)}, {v(T)}")
        P(f"v_add_f32 {v(acc)}, {v(acc)}, {v(T)}")
        P(f"v_cvt_pk_bf16_f32 {v(acc)}, {v(acc)}, {v(acc)}")
        P(f"v_and_b32 {v(acc)}, s{sHI}, {v(acc)}")
        P(f"v_mul_f32 {v(acc)}, s{sLOG2E}, {v(acc)}")
        P(f"v_exp_f32_e64 {v(acc)}, -{v(acc)}")
        P(f"v_add_f32 {v(acc)}, 1.0, {v(acc)}")
        P(f"v_rcp_f32 {v(acc)}, {v(acc)}")
        P(f"v_cvt_pk_bf16_f32 {v(acc)}, {v(acc)}, {v(acc)}")
        P(f"v_and_b32 {v(vCA)}, s{sHI}, {v(acc)}")
        P(f"v_mov_b32 {v(vCA+1)}, {v(vCA)}")
        P(f"v_sub_f32 {v(T)}, 1.0, {v(vCA)}")
        P(f"v_cvt_pk_bf16_f32 {v(T)}, {v(T)}, {v(T)}")
        P(f"v_and_b32 {v(vCB)}, s{sHI}, {v(T)}")
        P(f"v_mov_b32 {v(vCB+1)}, {v(vCB)}")

def build(prof=False, nt=True, opts=None):
    g = G(prof, nt, opts)
    g.gen()
    body = g.P.finish(verbose=True)
    body = body.replace("CODE_LAST", str(opts.get("codelast", 6400)))
    hdr = open("gated_mix__sliding_block_cached__sliding_block_cached__decode.s.ref").read().split("\n")
    top = []
    for ln in hdr:
        if ln.startswith("; @launch"):
            top.append(f"; @launch grid=(256,1,1) block=(256,1,1) lds={opts.get('lds', LDS_BYTES)}")
        elif ln.startswith(KNAME + ":"):
            top.append(ln); break
        else:
            top.append(ln)
    tail = f"""
.section .rodata,"a"
.p2align 6
.amdhsa_kernel {KNAME}
  .amdhsa_next_free_vgpr 256
  .amdhsa_next_free_sgpr 102
  .amdhsa_accum_offset 256
  .amdhsa_group_segment_fixed_size 0
  .amdhsa_kernarg_size 112
  .amdhsa_user_sgpr_count 2
  .amdhsa_user_sgpr_kernarg_segment_ptr 1
  .amdhsa_system_sgpr_workgroup_id_x 1
.end_amdhsa_kernel
"""
    return "\n".join(top) + "\n" + body + tail, g.stnames

if __name__ == "__main__":
    ap = argparse.ArgumentParser()
    ap.add_argument("-o", default="gated_mix__sliding_block_cached__sliding_block_cached__decode.s")
    ap.add_argument("--prof", action="store_true")
    ap.add_argument("--no-nt", action="store_true")
    ap.add_argument("--opt", default="")
    a = ap.parse_args()
    opts = {}
    for kv in a.opt.split(","):
        if kv: k_, v_ = kv.split("="); opts[k_] = int(v_)
    txt, names = build(a.prof, not a.no_nt, opts)
    open(a.o, "w").write(txt)
    print("stamps:", ",".join(names))
    open(a.o + ".names", "w").write(",".join(names))
```

```python
import sys, argparse
sys.path.insert(0, "gen")
from asmlib import Prog

KNAME = "gated_mix__sliding_block_cached__sliding_block_cached__decode_kernel"

QP_OFF = 0x10000; OP_OFF = 0x50000; FIN_OFF = 0xF0000; PROF_OFF = 0x140000
OREC = 640
WS_REC = 0x200000
L_QRED = 0
L_QL = 4096; L_MX = 5248; L_ORED = 5376
ORED_H = 544; ORED_W = 4 * ORED_H
LDS_BYTES = L_ORED + 4 * ORED_W + 256
L_LS = 5280; L_F = 4096

S_WQ, S_K, S_V, S_X, S_WS, S_WO, S_G, S_OUT = 32, 36, 40, 44, 48, 52, 56, 60
def srd(b): return f"s[{b}:{b+3}]"
CONST = {4096: 64, 8192: 65, 12288: 66, 16384: 67, 24576: 69, 32768: 71, 40960: 72, 49152: 73, 57344: 74, 262144: 70, 524288: 3, 786432: 101}
def soff(x): return "0" if x == 0 else f"s{CONST[x]}"
sP, sS, sW, sE, sMASK, sLOG2E = 75, 76, 77, 78, 79, 80
sSCL = 82
sCNT = 84; sT0 = 85; sT1 = 86; sT2 = 87
sQPST, sQPLD, sOPST, sOPLD, sSTST, sSTLD, sFINST, sFINLD, sXOFF = 88, 89, 90, 91, 92, 93, 94, 95, 96
sHI = 97
sT3 = 98; sT4 = 99
sR = 81
sSRC = 68

vL, vWq, vK, vV, vTau, vXs, vWo = 1, 2, 3, 4, 5, 6, 7
vM = 8
vQa, vQw, vQr, vMx, vOw, vOr = 12, 13, 14, 15, 17, 18
vL16 = 19
vLs = 16
vOG = 96; vF = 97
vT = 20
vM2 = 28
W = 32; K = 64; V = 128; X = 192
GX = X + 56
vCA = X + 56; vCB = X + 58

def v(i, n=1): return f"v{i}" if n == 1 else f"v[{i}:{i+n-1}]"

def ror(n):
    n &= 15
    return "quad_perm:[0,1,2,3]" if n == 0 else f"row_ror:{n}"

class G:
    def __init__(self, prof=False, nt=True, opts=None):
        self.P = Prog(); self.prof = prof; self.nst = 0
        self.nt = " nt" if nt else ""
        self.o = opts or {}

    def stamp(self, name):
        if not self.prof: return
        i = self.nst; self.nst += 1
        assert i < 14
        self.P(f"s_memrealtime s[{4+2*i}:{5+2*i}]")
        self.stnames.append(name)

    def snap(self, i):
        if self.prof: self.P(f"s_mov_b32 s{56+i}, s{sCNT}")

    def tagcheck(self, regs, acc):
        P = self.P
        for r in regs:
            P(f"v_xor_b32 {v(r)}, {v(r)}, {v(vTau)}")
        rs = list(regs)
        P(f"v_or3_b32 {v(acc)}, {v(rs[0])}, {v(rs[1])}, {v(rs[2])}")
        rs = rs[3:]
        while rs:
            if len(rs) >= 2:
                P(f"v_or3_b32 {v(acc)}, {v(acc)}, {v(rs[0])}, {v(rs[1])}"); rs = rs[2:]
            else:
                P(f"v_or_b32 {v(acc)}, {v(acc)}, {v(rs[0])}"); rs = rs[1:]
        P(f"v_cmp_ne_u32_sdwa vcc, {v(acc)}, 0 src0_sel:BYTE_0 src1_sel:DWORD")

    def gen(self):
        P = self.P; nt = self.nt; o = self.o
        self.stnames = []
        DUAL = o.get("dual", 1)
        NRED = 16
        P(f"s_cmp_ge_u32 s2, 256")
        P(f"s_cbranch_scc1 L_END")
        if o.get("ipf", 0):
            P("s_getpc_b64 s[98:99]")
            P("v_lshlrev_b32 v254, 5, v0")
            P("v_min_u32 v254, CODE_LAST, v254")
            P("global_load_dword v255, v254, s[98:99]")
        P("s_load_dwordx16 s[4:19], s[0:1], 0")
        P("s_load_dwordx8 s[20:27], s[0:1], 64")
        P("s_load_dwordx4 s[28:31], s[0:1], 96")
        if self.prof:
            P("s_memrealtime s[100:101]")
        t0, t1, t2, t3 = vT, vT+1, vT+2, vT+3
        P(f"v_and_b32 {v(vL)}, 63, v0")
        P(f"v_lshrrev_b32 {v(t0)}, 4, v0")
        P(f"v_and_b32 {v(t1)}, 15, v0")
        P(f"v_lshlrev_b32 {v(t1)}, 4, {v(t1)}")
        P(f"v_lshl_or_b32 {v(vWq)}, {v(t0)}, 16, {v(t1)}")
        P(f"v_and_b32 {v(t2)}, 7, v0")
        P(f"v_lshlrev_b32 {v(t2)}, 1, {v(t2)}")
        P(f"v_lshl_or_b32 {v(vXs)}, {v(t0)}, 4, {v(t2)}")
        P(f"v_lshlrev_b32 {v(vL16)}, 4, {v(vL)}")
        P(f"v_lshrrev_b32 {v(t0)}, 6, v0")
        P(f"v_lshl_or_b32 {v(vV)}, {v(t0)}, 12, {v(vL16)}")
        P(f"v_and_b32 {v(t2)}, 3, {v(vL)}")
        P(f"v_lshlrev_b32 {v(t2)}, 4, {v(t2)}")
        P(f"v_bfe_u32 {v(t3)}, {v(vL)}, 2, 2")
        P(f"v_lshl_or_b32 {v(t2)}, {v(t3)}, 8, {v(t2)}")
        P(f"v_lshrrev_b32 {v(t3)}, 4, {v(vL)}")
        P(f"v_lshl_or_b32 {v(t2)}, {v(t3)}, 6, {v(t2)}")
        P(f"v_lshl_or_b32 {v(vK)}, {v(t0)}, 12, {v(t2)}")
        P(f"v_readfirstlane_b32 s{sW}, {v(t0)}")
        P(f"s_and_b32 s{sP}, s2, 15")
        P(f"s_lshr_b32 s{sS}, s2, 4")
        P(f"s_and_b32 s{sT0}, s2, 7")
        P(f"s_lshr_b32 s{sT1}, s2, 6")
        P(f"s_and_b32 s{sT2}, s{sS}, 3")
        P(f"s_lshl_b32 s{sT3}, s{sT0}, 2")
        P(f"s_add_u32 s{sT3}, s{sT3}, s{sT2}")
        P(f"s_lshl_b32 s{sT3}, s{sT3}, 8")
        P(f"s_lshl_b32 s{sT4}, s{sT1}, 20")
        P(f"s_add_u32 s{sT3}, s{sT3}, s{sT4}")
        P(f"s_lshl_b32 s{sT4}, s{sT0}, 23")
        P(f"s_lshl_b32 s{sCNT}, s{sS}, {14 if o.get('ilv', 0) else 16}")
        P(f"s_add_u32 s{sT4}, s{sT4}, s{sCNT}")
        P(f"s_add_u32 s{sT4}, s{sT4}, 7340032")
        P(f"s_lshl_b32 s{sXOFF}, s{sT1}, 8")
        P(f"s_mov_b32 s{sR}, s2")
        P(f"s_lshl_b32 s{sSRC}, s{sP}, 3")
        P(f"s_lshr_b32 s{sCNT}, s{sS}, 1")
        P(f"s_add_u32 s{sSRC}, s{sSRC}, s{sCNT}")
        ILV = o.get("ilv", 0)
        for c, r in CONST.items():
            if c < 262144: P(f"s_mov_b32 s{r}, {c}")
        for b, n in ((S_WQ, 0x100000), (S_K, 0xC4000 if ILV else 65536), (S_V, 0xC4000 if ILV else 65536), (S_X, 1024), (S_WS, WS_REC), (S_WO, 65024), (S_G, 1024), (S_OUT, 1024)):
            P(f"s_mov_b32 s{b+2}, {n}")
            P(f"s_mov_b32 s{b+3}, 0x00020000")
        P("s_waitcnt lgkmcnt(0)")
        P(f"s_load_dword s{sE}, s[30:31], 0")
        if ILV:
            for c, r in CONST.items():
                if c >= 262144: P(f"s_mov_b32 s{r}, {c}")
        P(f"s_mov_b64 s[{S_X}:{S_X+1}], s[4:5]")
        P("s_bitcmp1_b32 s2, 3")
        P(f"s_cselect_b64 s[{S_WQ}:{S_WQ+1}], s[20:21], s[10:11]")
        P(f"s_cselect_b64 s[{S_K}:{S_K+1}], s[16:17], s[6:7]")
        P(f"s_cselect_b64 s[{S_V}:{S_V+1}], s[18:19], s[8:9]")
        P(f"s_cselect_b64 s[{S_WO}:{S_WO+1}], s[22:23], s[12:13]")
        P(f"s_mov_b64 s[{S_G}:{S_G+1}], s[24:25]")
        P(f"s_cmp_ge_u32 s{sR}, {NRED}")
        P("s_cbranch_scc1 L_GL_DONE")
        P(f"buffer_load_dwordx4 {v(GX,4)}, {v(vL16)}, {srd(S_X)}, 0 offen")
        P(f"buffer_load_dwordx4 {v(GX+4,4)}, {v(vL16)}, {srd(S_G)}, 0 offen")
        P.label("L_GL_DONE")
        P(f"buffer_load_ushort {v(vT+8-1)}, {v(vXs)}, {srd(S_X)}, s{sXOFF} offen")
        P(f"s_add_u32 s{S_WQ}, s{S_WQ}, s{sT3}")
        P(f"s_addc_u32 s{S_WQ+1}, s{S_WQ+1}, 0")
        for t in range(8):
            P(f"buffer_load_dwordx4 {v(W+4*t,4)}, {v(vWq)}, {srd(S_WQ)}, {soff(8192*t)} offen{nt}")
        P(f"s_add_u32 s{S_K}, s{S_K}, s{sT4}")
        P(f"s_addc_u32 s{S_K+1}, s{S_K+1}, 0")
        P(f"s_add_u32 s{S_V}, s{S_V}, s{sT4}")
        P(f"s_addc_u32 s{S_V+1}, s{S_V+1}, 0")
        P(f"s_mov_b64 s[{S_WS}:{S_WS+1}], s[30:31]")
        GQ = X + 32
        KST = 262144 if ILV else 16384
        GS = X + 32
        def kload(n): P(f"buffer_load_dwordx4 {v(K+4*n,4)}, {v(vK)}, {srd(S_K)}, {soff(KST*(n>>2))} offen offset:{1024*(n&3)}{nt}")
        def vload(n): P(f"buffer_load_dwordx4 {v(V+4*n,4)}, {v(vV)}, {srd(S_V)}, {soff(KST*(n>>2))} offen offset:{1024*(n&3)}{nt}")
        def woload(u): P(f"buffer_load_dwordx4 {v(W+4*u,4)}, {v(vWo)}, {srd(S_WO)}, {soff(4096*(u>>1))} offen offset:{256*(u&1)}{nt}")
        def qpload(i):
            for h in range(2):
                P(f"buffer_load_dwordx4 {v(W+8*i+4*h,4)}, {v(vV)}, {srd(S_WS)}, s{sQPLD} offen offset:{1024*h} sc1")
        def stload(i=0): P(f"buffer_load_dwordx4 {v(GS,4)}, {v(vL16)}, {srd(S_WS)}, s{sSTLD} offen sc1")
        FN = {"k": kload, "v": vload, "wo": woload, "qp": qpload, "st": stload}
        queue = [("xs", 0)] + [("wq", t) for t in range(8)]
        QP = [o.get("q1", 16), o.get("q2", 19)]
        WIN = o.get("win", 9)
        kv = [("k", n) for n in range(16)] + [("v", n) for n in range(16)]
        pend = []
        for j, e in enumerate(kv):
            for i, qp_ in enumerate(QP):
                if qp_ == j: pend.append(("qp", i))
            pend.append(e)
        WOP = o.get("wopos", 16)
        wi = pend.index(("v", WOP)) if WOP < 16 else len(pend)
        pend[wi:wi] = [("wo", u) for u in range(8)]
        def issue(n=1, win=None):
            for _ in range(n):
                if not pend: return
                if win is not None: P(f"s_waitcnt vmcnt({win-1})")
                kind, i = pend.pop(0)
                FN[kind](i); queue.append((kind, i))
                if kind == "qp": queue.append((kind + "x", i))
        def issue_until(op, win=None):
            while op not in queue: issue(1, win)
        def wait_for(op):
            if op[0] == "qp": op = ("qpx", op[1])
            idx = len(queue) - 1 - queue[::-1].index(op)
            P(f"s_waitcnt vmcnt({min(63, len(queue) - 1 - idx)})")
        NK0 = o.get("nk0", 2)
        issue(NK0)
        P(f"v_and_b32 {v(t1)}, 1, {v(vL)}")
        P(f"v_lshlrev_b32 {v(t1)}, 4, {v(t1)}")
        P(f"s_mov_b32 s{sT3}, 0xffff")
        P(f"v_lshlrev_b32_e64 {v(t1)}, {v(t1)}, s{sT3}")
        P(f"v_bfe_u32 {v(t2)}, {v(vL)}, 1, 3")
        for k in range(4):
            P(f"v_cmp_eq_u32 vcc, {k}, {v(t2)}")
            P(f"v_cndmask_b32 {v(vM+k)}, 0, {v(t1)}, vcc")
        for k in range(4):
            P(f"v_cmp_eq_u32 vcc, {4+k}, {v(t2)}")
            P(f"v_cndmask_b32 {v(vM2+k)}, 0, {v(t1)}, vcc")
        P(f"s_mov_b64 s[{S_OUT}:{S_OUT+1}], s[26:27]")
        P(f"s_and_b32 s{sT3}, s{sSRC}, 63")
        P(f"s_lshl_b32 s{sT3}, s{sT3}, 16")
        P(f"s_and_b32 s{sT4}, s{sS}, 1")
        P(f"s_lshl_b32 s{sT4}, s{sT4}, 9")
        P(f"s_add_u32 s{sT3}, s{sT3}, s{sT4}")
        P(f"s_add_u32 s{S_WO}, s{S_WO}, s{sT3}")
        P(f"s_addc_u32 s{S_WO+1}, s{S_WO+1}, 0")
        P(f"s_lshl_b32 s{sQPLD}, s{sP}, 14")
        P(f"s_add_u32 s{sQPLD}, s{sQPLD}, {QP_OFF}")
        P(f"s_lshl_b32 s{sT3}, s{sT2}, 12")
        P(f"s_lshl_b32 s{sT4}, s{sT1}, 9")
        P(f"s_add_u32 s{sQPST}, s{sQPLD}, s{sT3}")
        P(f"s_add_u32 s{sQPST}, s{sQPST}, s{sT4}")
        P(f"s_lshl_b32 s{sT3}, s{sP}, 2")
        P(f"s_add_u32 s{sT4}, s{sT3}, s{sW}")
        P(f"s_lshl_b32 s{sT4}, s{sT4}, 4")
        P(f"s_add_u32 s{sT4}, s{sT4}, s{sS}")
        P(f"s_mul_i32 s{sOPST}, s{sT4}, {OREC}")
        P(f"s_add_u32 s{sOPST}, s{sOPST}, {OP_OFF}")
        P(f"s_add_u32 s{sT4}, s{sT3}, s{sT1}")
        P(f"s_mul_i32 s{sSTLD}, s{sT4}, {16*OREC}")
        P(f"s_add_u32 s{sSTLD}, s{sSTLD}, {OP_OFF}")
        P(f"s_bfe_u32 s{sT4}, s{sS}, {1 | (1 << 16)}")
        P(f"s_lshl_b32 s{sT4}, s{sT4}, 2")
        P(f"s_add_u32 s{sT4}, s{sT4}, s{sW}")
        P(f"s_lshl_b32 s{sT4}, s{sT4}, 6")
        P(f"s_add_u32 s{sOPLD}, s{sSTLD}, s{sT4}")
        P(f"s_add_u32 s{sSTLD}, s{sSTLD}, 512")
        P(f"s_and_b32 s{sT4}, s{sS}, 1")
        P(f"s_lshl_b32 s{sFINST}, s{sT4}, 10")
        P(f"s_lshl_b32 s{sT4}, s{sSRC}, 11")
        P(f"s_add_u32 s{sFINST}, s{sFINST}, s{sT4}")
        P(f"s_add_u32 s{sFINST}, s{sFINST}, {FIN_OFF}")
        P(f"s_lshl_b32 s{sT4}, s{sR}, 7")
        P(f"s_lshl_b32 s{sFINLD}, s{sW}, 16")
        P(f"s_add_u32 s{sFINLD}, s{sFINLD}, s{sT4}")
        P(f"s_add_u32 s{sFINLD}, s{sFINLD}, {FIN_OFF}")
        P(f"s_mov_b32 s{sMASK}, 0xffffff00")
        P(f"s_mov_b32 s{sLOG2E}, 0x3fb8aa3b")
        P(f"s_mov_b32 s{sSCL}, 0x3db504f3")
        P(f"s_mov_b32 s{sSCL+1}, 0x3db504f3")
        P(f"s_mov_b32 s{sHI}, 0xffff0000")
        P(f"s_mov_b32 s{sCNT}, 20000")
        P(f"v_mov_b32 {v(t0)}, s{sW}")
        P(f"v_and_b32 {v(t1)}, 15, {v(vL)}")
        P(f"v_lshlrev_b32 {v(t1)}, 5, {v(t1)}")
        P(f"v_lshrrev_b32 {v(t2)}, 4, {v(vL)}")
        P(f"v_lshl_or_b32 {v(t1)}, {v(t2)}, 4, {v(t1)}")
        P(f"v_lshl_or_b32 {v(vQa)}, {v(t0)}, 9, {v(t1)}")
        P(f"v_and_b32 {v(t1)}, 31, {v(vL)}")
        P(f"v_lshlrev_b32 {v(t1)}, 3, {v(t1)}")
        P(f"v_lshrrev_b32 {v(t3)}, 5, {v(vL)}")
        P(f"v_lshl_or_b32 {v(t1)}, {v(t3)}, 1, {v(t1)}")
        P(f"s_mul_i32 s{sT3}, s{sW}, 272")
        P(f"s_add_u32 s{sT3}, s{sT3}, {L_QL}")
        P(f"v_add_u32 {v(vQw)}, s{sT3}, {v(t1)}")
        P(f"v_and_b32 {v(t1)}, 3, {v(vL)}")
        P(f"v_mul_u32_u24 {v(t3)}, 272, {v(t1)}")
        P(f"v_lshrrev_b32 {v(vQr)}, 2, {v(vL)}")
        P(f"v_lshl_add_u32 {v(vQr)}, {v(vQr)}, 4, {v(t3)}")
        P(f"v_add_u32 {v(vQr)}, {L_QL}, {v(vQr)}")
        P(f"v_lshlrev_b32 {v(vMx)}, 2, {v(t1)}")
        P(f"v_add_u32 {v(vMx)}, {L_MX}, {v(vMx)}")
        P(f"s_lshl_b32 s{sT3}, s{sW}, 2")
        P(f"s_add_u32 s{sT3}, s{sT3}, {L_LS}")
        P(f"v_lshlrev_b32 {v(vLs)}, 4, {v(t1)}")
        P(f"v_add_u32 {v(vLs)}, s{sT3}, {v(vLs)}")
        P(f"v_mul_u32_u24 {v(t3)}, {ORED_H}, {v(t1)}")
        P(f"v_lshl_add_u32 {v(t3)}, {v(t2)}, 7, {v(t3)}")
        P(f"v_bfe_u32 {v(t1)}, {v(vL)}, 2, 2")
        P(f"v_lshl_add_u32 {v(t3)}, {v(t1)}, 3, {v(t3)}")
        P(f"s_mul_i32 s{sT3}, s{sW}, {ORED_W}")
        P(f"s_add_u32 s{sT3}, s{sT3}, {L_ORED}")
        P(f"v_add_u32 {v(vOw)}, s{sT3}, {v(t3)}")
        P(f"s_mul_i32 s{sT3}, s{sW}, {ORED_H}")
        P(f"s_add_u32 s{sT3}, s{sT3}, {L_ORED}")
        P(f"v_add_u32 {v(vOr)}, s{sT3}, {v(vL16)}")
        P(f"v_and_b32 {v(t1)}, 1, {v(t2)}")
        P(f"v_lshlrev_b32 {v(t1)}, 1, {v(t1)}")
        P(f"v_lshrrev_b32 {v(t3)}, 1, {v(t2)}")
        P(f"v_or_b32 {v(t1)}, {v(t1)}, {v(t3)}")
        P(f"v_and_b32 {v(t3)}, 15, {v(vL)}")
        P(f"v_lshlrev_b32 {v(t3)}, 4, {v(t3)}")
        P(f"v_lshl_or_b32 {v(t3)}, {v(t1)}, 10, {v(t3)}")
        P(f"v_lshl_or_b32 {v(vWo)}, {v(t0)}, 14, {v(t3)}")
        P(f"v_mov_b32 {v(t1)}, 0xff800000")
        P(f"ds_write_b32 {v(vMx)}, {v(t1)}")
        XS = vT + 7
        wait_for(("xs", 0))
        P(f"v_lshl_or_b32 {v(XS)}, {v(XS)}, 16, {v(XS)}")
        for t in range(8):
            for k in range(4):
                P(f"v_and_b32_dpp {v(X+4*t+k)}, {v(XS)}, {v(vM+k)} row_newbcast:{t} row_mask:0xf bank_mask:0xf")
        D = vT + 4
        for t in range(8):
            wait_for(("wq", t))
            P(f"v_mfma_f32_16x16x32_bf16 {v(D,4)}, {v(X+4*t,4)}, {v(W+4*t,4)}, {'0' if t==0 else v(D,4)}")
            issue(1)
        self.stamp("wq_done")
        P("s_mov_b32 exec_hi, 0")
        P(f"ds_write_b128 {v(vQa)}, {v(D,4)} offset:{L_QRED}")
        P("s_mov_b32 exec_hi, -1")
        P("s_waitcnt lgkmcnt(0)")
        P("s_barrier")
        P(f"s_add_u32 s{sE}, s{sE}, 1")
        P(f"s_and_b32 s{sT3}, s{sE}, 0xff")
        P(f"v_mov_b32 {v(vTau)}, s{sT3}")
        P(f"s_cmp_lg_u32 s{sW}, 0")
        P("s_cbranch_scc1 L_QPUB_DONE")
        P("s_mov_b32 exec_hi, 0")
        for k in range(4):
            P(f"ds_read_b128 {v(X+4*k,4)}, {v(vL16)} offset:{L_QRED+512*k}")
        P("s_waitcnt lgkmcnt(0)")
        self.sum4(X)
        for k in range(4):
            P(f"v_and_or_b32 {v(X+k)}, {v(X+k)}, s{sMASK}, {v(vTau)}")
        P(f"buffer_store_dwordx4 {v(X,4)}, {v(vL16)}, {srd(S_WS)}, s{sQPST} offen sc1")
        if DUAL: P(f"buffer_store_dwordx4 {v(X,4)}, {v(vL16)}, {srd(S_WS)}, s{sQPST} offen")
        P("s_mov_b32 exec_hi, -1")
        P.label("L_QPUB_DONE")
        P("s_nop 1")
        self.stamp("q_pub")
        P(f"s_cmp_ge_u32 s{sR}, {NRED}")
        P("s_cbranch_scc1 L_GATE_DONE")
        self.gate()
        P.label("L_GATE_DONE")
        BS = X + 16
        for k in range(16):
            P(f"v_mov_b32 {v(BS+k)}, 0")
        sIss = sT0
        issue_until(("qp", 0), WIN)
        issue(o.get("n1", 7), WIN)
        assert ("qp", 1) in queue
        def qred(i):
            B = W + 8 * i
            P(f"v_pk_add_f32 {v(GQ,2)}, {v(B,2)}, {v(B+4,2)}")
            P(f"v_pk_add_f32 {v(GQ+2,2)}, {v(B+2,2)}, {v(B+6,2)}")
        NB = o.get("nb", 3)
        P(f"s_mov_b32 s{sIss}, 0")
        wait_for(("k", 15))
        if self.prof and o.get("kst", 1): self.stamp("k15")
        wait_for(("qp", 0))
        self.tagcheck(list(range(W, W+8)), vT)
        P("s_cbranch_vccz L_Q0")
        saved_q = list(queue); saved_p = list(pend)
        if self.prof: P(f"s_sub_u32 s{sCNT}, s{sCNT}, 1")
        qpload(0); queue += [("qp", 2), ("qpx", 2)]
        issue(NB, WIN + 2)
        P(f"s_mov_b32 s{sIss}, 1")
        wait_for(("qp", 1))
        self.tagcheck(list(range(W+8, W+16)), vT)
        P("s_cbranch_vccz L_Q1")
        if self.prof: P(f"s_sub_u32 s{sCNT}, s{sCNT}, 1")
        qpload(1); queue += [("qp", 3), ("qpx", 3)]
        issue(NB, WIN + 2)
        P(f"s_mov_b32 s{sIss}, 2")
        assert not any(k == "wo" for k, _ in queue), "wo issued while W regs are poll targets"
        wait_for(("qp", 2))
        self.tagcheck(list(range(W, W+8)), vT)
        P("s_cbranch_vccz L_Q0")
        if self.prof: P(f"s_sub_u32 s{sCNT}, s{sCNT}, 1")
        wait_for(("qp", 3))
        P.label("L_QCHK")
        self.tagcheck(list(range(W+8, W+16)), vT)
        P("s_cbranch_vccz L_Q1")
        P(f"s_sub_u32 s{sCNT}, s{sCNT}, 1")
        P("s_cbranch_scc1 L_Q1")
        qpload(1)
        P("s_waitcnt vmcnt(0)")
        P("s_branch L_QCHK")
        P.label("L_Q0")
        qred(0)
        P("s_branch L_QC")
        P.label("L_Q1")
        qred(1)
        P.label("L_QC")
        queue[:] = saved_q; pend[:] = saved_p
        def guarded(level, n, lab):
            P(f"s_cmp_ge_u32 s{sIss}, {level}")
            P(f"s_cbranch_scc1 {lab}")
            issue(n)
            P.label(lab)
        self.stamp("q_got"); self.snap(0)
        P(f"v_permlane32_swap_b32 {v(GQ)}, {v(GQ+1)}")
        P(f"v_permlane32_swap_b32 {v(GQ+2)}, {v(GQ+3)}")
        P(f"v_add_f32 {v(GQ)}, {v(GQ)}, {v(GQ+1)}")
        P(f"v_add_f32 {v(GQ+2)}, {v(GQ+2)}, {v(GQ+3)}")
        P(f"v_cvt_pk_bf16_f32 {v(GQ)}, {v(GQ)}, {v(GQ+2)}")
        P(f"ds_write_b16 {v(vQw)}, {v(GQ)}")
        P(f"ds_write_b16_d16_hi {v(vQw)}, {v(GQ)} offset:4")
        P("s_waitcnt lgkmcnt(0)")
        P("s_barrier")
        BQ = vT + 4
        P(f"ds_read_b128 {v(BQ,4)}, {v(vQr)}")
        guarded(1, NB, "L_B1")
        P("s_waitcnt lgkmcnt(0)")
        DS = X
        S = X + 32
        def mf(n): P(f"v_mfma_f32_16x16x32_bf16 {v(DS+4*(n&3),4)}, {v(K+4*n,4)}, {v(BQ,4)}, 0")
        def fold(n):
            g, u = n >> 2, n & 3
            for b in range(4):
                src = DS + 4*(n&3) + b
                if b == 0:
                    P(f"v_mov_b32_dpp {v(S+g)}, {v(src)} {ror(4*(u-b))} row_mask:0xf bank_mask:{1<<u:#x}")
                else:
                    P(f"v_add_f32_dpp {v(S+g)}, {v(src)}, {v(S+g)} {ror(4*(u-b))} row_mask:0xf bank_mask:{1<<u:#x}")
        mf(0); mf(1); mf(2)
        for n in range(16):
            fold(n)
            if n + 3 < 16: mf(n + 3)
        guarded(2, NB, "L_B2")
        R = X + 36
        def rnd():
            P(f"v_cvt_pk_bf16_f32 {v(R)}, {v(S)}, {v(S+1)}")
            P(f"v_cvt_pk_bf16_f32 {v(R+1)}, {v(S+2)}, {v(S+3)}")
            P(f"v_lshlrev_b32 {v(S)}, 16, {v(R)}")
            P(f"v_and_b32 {v(S+1)}, s{sHI}, {v(R)}")
            P(f"v_lshlrev_b32 {v(S+2)}, 16, {v(R+1)}")
            P(f"v_and_b32 {v(S+3)}, s{sHI}, {v(R+1)}")
        rnd()
        P(f"v_pk_mul_f32 {v(S,2)}, {v(S,2)}, s[{sSCL}:{sSCL+1}]")
        P(f"v_pk_mul_f32 {v(S+2,2)}, {v(S+2,2)}, s[{sSCL}:{sSCL+1}]")
        rnd()
        Mx = X + 40
        P(f"v_max3_f32 {v(Mx)}, {v(S)}, {v(S+1)}, {v(S+2)}")
        P(f"v_max_f32 {v(Mx)}, {v(Mx)}, {v(S+3)}")
        P(f"v_max_f32_dpp {v(Mx)}, {v(Mx)}, {v(Mx)} row_ror:4 row_mask:0xf bank_mask:0xf")
        P(f"v_max_f32_dpp {v(Mx)}, {v(Mx)}, {v(Mx)} row_ror:8 row_mask:0xf bank_mask:0xf")
        P(f"ds_max_f32 {v(vMx)}, {v(Mx)}")
        P("s_waitcnt lgkmcnt(0)")
        P("s_barrier")
        P(f"ds_read_b32 {v(Mx)}, {v(vMx)}")
        P("s_waitcnt lgkmcnt(0)")
        P(f"v_mul_f32 {v(R)}, s{sLOG2E}, {v(Mx)}")
        for g in range(4):
            P(f"v_fma_f32 {v(S+g)}, {v(S+g)}, s{sLOG2E}, -{v(R)}")
        for g in range(4):
            P(f"v_exp_f32 {v(S+g)}, {v(S+g)}")
        PL = X + 44; PH = X + 36
        for g in range(4):
            P(f"v_cvt_pk_bf16_f32 {v(PL+g)}, {v(S+g)}, 0")
            P(f"v_cvt_pk_bf16_f32 {v(PH+g)}, 0, {v(S+g)}")
        P(f"v_pk_add_f32 {v(S,2)}, {v(S,2)}, {v(S+2,2)}")
        P(f"v_add_f32 {v(S)}, {v(S)}, {v(S+1)}")
        P(f"v_add_f32_dpp {v(S)}, {v(S)}, {v(S)} row_ror:4 row_mask:0xf bank_mask:0xf")
        P(f"v_add_f32_dpp {v(S)}, {v(S)}, {v(S)} row_ror:8 row_mask:0xf bank_mask:0xf")
        P(f"v_mov_b32 {v(S+1)}, {v(S)}")
        P(f"v_permlane16_swap_b32 {v(S)}, {v(S+1)}")
        P(f"v_add_f32 {v(S)}, {v(S)}, {v(S+1)}")
        P(f"v_mov_b32 {v(S+1)}, {v(S)}")
        P(f"v_permlane32_swap_b32 {v(S)}, {v(S+1)}")
        P(f"v_add_f32 {v(S)}, {v(S)}, {v(S+1)}")
        P("s_mov_b64 exec, 15")
        P(f"ds_write_b32 {v(vLs)}, {v(S)}")
        P("s_mov_b64 exec, -1")
        P(f"v_lshrrev_b32 {v(vOG)}, 2, {v(vL)}")
        P(f"v_mul_u32_u24 {v(vOG)}, {OREC}, {v(vOG)}")
        P(f"v_and_b32 {v(vT)}, 3, {v(vL)}")
        P(f"v_lshl_add_u32 {v(vOG)}, {v(vT)}, 4, {v(vOG)}")
        P(f"v_lshrrev_b32 {v(vF)}, 3, {v(vL)}")
        P(f"v_lshlrev_b32 {v(vF)}, 11, {v(vF)}")
        P(f"v_and_b32 {v(vT)}, 7, {v(vL)}")
        P(f"v_lshl_add_u32 {v(vF)}, {v(vT)}, 4, {v(vF)}")
        for i in range(1, 4):
            P(f"v_add_u32 {v(vF+i)}, {16384*i}, {v(vF)}")
        self.stamp("sm_done")
        ACC = X + 48
        issue(o.get("pre", 1))
        STN = o.get("stn", 8)
        for n in range(16):
            g, u0 = n >> 2, n & 3
            for m in range(2):
                bs = BS + 4 * ((2*n + m) & 3)
                src = (PL if m == 0 else PH) + g
                for u in range(4):
                    P(f"v_mov_b32_dpp {v(bs+u)}, {v(src)} {ror(4*(u-u0))} row_mask:0xf bank_mask:{1<<u:#x}")
                if m == 0:
                    issue_until(("v", n))
                    wait_for(("v", n))
                P(f"v_mfma_f32_16x16x32_bf16 {v(ACC+4*m,4)}, {v(V+4*n,4)}, {v(bs,4)}, {'0' if n==0 else v(ACC+4*m,4)}")
            issue(1)
        issue(99)
        self.stamp("pv_done")
        for r in range(4):
            P(f"ds_write2_b32 {v(vOw)}, {v(ACC+r)}, {v(ACC+4+r)} offset0:{8*r} offset1:{8*r+1}")
        P("s_waitcnt lgkmcnt(0)")
        P("s_barrier")
        O = X
        TL = X + 16; TM = X + 20
        P("s_mov_b32 exec_hi, 0xff")
        for k in range(4):
            P(f"ds_read_b128 {v(O+4*k,4)}, {v(vOr)} offset:{ORED_W*k}")
        P(f"s_lshl_b32 s{sT3}, s{sW}, 4")
        P(f"v_mov_b32 {v(vT+3)}, s{sT3}")
        P(f"s_lshl_b32 s{sT3}, s{sW}, 2")
        P(f"v_mov_b32 {v(vT+4)}, s{sT3}")
        P(f"ds_read_b128 {v(TL,4)}, {v(vT+3)} offset:{L_LS}")
        P(f"ds_read_b32 {v(TM)}, {v(vT+4)} offset:{L_MX}")
        P("s_waitcnt lgkmcnt(2)")
        self.sum4(O)
        for k in range(4):
            P(f"v_and_or_b32 {v(O+k)}, {v(O+k)}, s{sMASK}, {v(vTau)}")
        P("s_waitcnt lgkmcnt(0)")
        P(f"v_pk_add_f32 {v(TL,2)}, {v(TL,2)}, {v(TL+2,2)}")
        P("s_mov_b32 exec_lo, 0")
        P(f"v_add_f32 {v(TL)}, {v(TL)}, {v(TL+1)}")
        P(f"v_or_b32 {v(O)}, {v(TM)}, {v(vTau)}")
        P(f"v_mov_b32 {v(O+2)}, {v(vTau)}")
        P(f"v_mov_b32 {v(O+3)}, {v(vTau)}")
        P(f"v_and_or_b32 {v(O+1)}, {v(TL)}, s{sMASK}, {v(vTau)}")
        P("s_mov_b32 exec_lo, -1")
        P(f"buffer_store_dwordx4 {v(O,4)}, {v(vL16)}, {srd(S_WS)}, s{sOPST} offen sc1")
        if DUAL: P(f"buffer_store_dwordx4 {v(O,4)}, {v(vL16)}, {srd(S_WS)}, s{sOPST} offen")
        P("s_mov_b32 exec_hi, -1")
        GA = X + 32; GB = X + 40; GR = X + 48
        def ogload(B):
            P(f"buffer_load_dwordx4 {v(B,4)}, {v(vOG)}, {srd(S_WS)}, s{sSTLD} offen sc1")
            P(f"buffer_load_dwordx4 {v(B+4,4)}, {v(vOG)}, {srd(S_WS)}, s{sOPLD} offen sc1")
        OM = o.get("om", 0)
        def stl(B): P(f"buffer_load_dwordx4 {v(B,4)}, {v(vOG)}, {srd(S_WS)}, s{sSTLD} offen sc1")
        def ol(B): P(f"buffer_load_dwordx4 {v(B+4,4)}, {v(vOG)}, {srd(S_WS)}, s{sOPLD} offen sc1")
        if OM == 0:
            ogload(GA)
            self.stamp("o_pub")
            P("s_waitcnt vmcnt(4)" if DUAL else "s_waitcnt vmcnt(3)")
            self.stamp("st_got")
            ogload(GB)
            P.label("L_OCHK")
            P("s_waitcnt vmcnt(2)")
            self.tagcheck(list(range(GA, GA+8)), vT)
            P("s_cbranch_vccz L_OA")
            ogload(GA)
            P("s_waitcnt vmcnt(2)")
            self.tagcheck(list(range(GB, GB+8)), vT)
            P("s_cbranch_vccz L_OB")
            ogload(GB)
            P(f"s_sub_u32 s{sCNT}, s{sCNT}, 1")
            P("s_cbranch_scc0 L_OCHK")
        elif OM == 1:
            ogload(GA)
            self.stamp("o_pub")
            self.stamp("st_got")
            P.label("L_OCHK")
            P("s_waitcnt vmcnt(0)")
            self.tagcheck(list(range(GA, GA+8)), vT)
            P("s_cbranch_vccz L_OA")
            ogload(GA)
            P(f"s_sub_u32 s{sCNT}, s{sCNT}, 1")
            P("s_cbranch_scc0 L_OCHK")
            P("s_branch L_OA")
        elif OM == 4:
            ogload(GA)
            self.stamp("o_pub")
            self.stamp("st_got")
            P.label("L_OCHK")
            P("s_waitcnt vmcnt(0)")
            self.tagcheck(list(range(GA, GA+8)), vT)
            P("s_cbranch_vccz L_OX")
            P("s_mov_b64 exec, vcc")
            ogload(GA)
            P(f"s_sub_u32 s{sCNT}, s{sCNT}, 1")
            P("s_cbranch_scc0 L_OCHK")
            P.label("L_OX")
            P("s_mov_b64 exec, -1")
        else:
            stl(GA)
            self.stamp("o_pub")
            if OM == 3:
                P("s_waitcnt vmcnt(2)")
                stl(GB)
            P(f"s_min_u32 s{sCNT}, s{sCNT}, 20000")
            P.label("L_OCHK")
            P("s_waitcnt vmcnt(1)" if OM == 3 else "s_waitcnt vmcnt(0)")
            self.tagcheck(list(range(GA, GA+4)), vT)
            P("s_cbranch_vccz L_OSA" if OM == 3 else "s_cbranch_vccz L_OS")
            stl(GA)
            if OM == 3:
                P("s_waitcnt vmcnt(1)")
                self.tagcheck(list(range(GB, GB+4)), vT)
                P("s_cbranch_vccz L_OSB")
                stl(GB)
            P(f"s_sub_u32 s{sCNT}, s{sCNT}, 1")
            P("s_cbranch_scc0 L_OCHK")
            if OM == 3:
                P.label("L_OSB")
                ol(GA)
                for k in range(2): P(f"v_mov_b32 {v(GB+4+k)}, {v(GB+k)}")
                P("s_branch L_OS2")
                P.label("L_OSA")
                ol(GA)
                for k in range(2): P(f"v_mov_b32 {v(GB+4+k)}, {v(GA+k)}")
                P.label("L_OS2")
                P("s_nop 1")
            if OM == 2:
                P.label("L_OS")
                ol(GA)
                P(f"s_min_u32 s{sCNT}, s{sCNT}, 20000")
            self.stamp("st_got")
        def post(B, mid=None, GS=None):
            GO = B + 4
            if GS is None: GS = B
            a, b_ = vT, vT+1
            P(f"v_max_f32_dpp {v(a)}, {v(GS)}, {v(GS)} row_ror:4 row_mask:0xf bank_mask:0xf")
            P(f"v_max_f32_dpp {v(a)}, {v(a)}, {v(a)} row_ror:8 row_mask:0xf bank_mask:0xf")
            P(f"v_mov_b32 {v(b_)}, {v(a)}")
            P(f"v_permlane16_swap_b32 {v(a)}, {v(b_)}")
            P(f"v_max_f32 {v(a)}, {v(a)}, {v(b_)}")
            P(f"v_mov_b32 {v(b_)}, {v(a)}")
            P(f"v_permlane32_swap_b32 {v(a)}, {v(b_)}")
            P(f"v_max_f32 {v(a)}, {v(a)}, {v(b_)}")
            P(f"v_mul_f32 {v(a)}, s{sLOG2E}, {v(a)}")
            P(f"v_fma_f32 {v(GS)}, {v(GS)}, s{sLOG2E}, -{v(a)}")
            P(f"v_exp_f32 {v(GS)}, {v(GS)}")
            P(f"v_mul_f32 {v(a)}, {v(GS)}, {v(GS+1)}")
            P(f"v_mov_b32 {v(GS+1)}, {v(GS)}")
            if mid: mid()
            P(f"v_pk_mul_f32 {v(GR,2)}, {v(GO,2)}, {v(GS,2)}")
            P(f"v_pk_mul_f32 {v(GR+2,2)}, {v(GO+2,2)}, {v(GS,2)}")
            P(f"v_add_f32_dpp {v(a)}, {v(a)}, {v(a)} row_ror:4 row_mask:0xf bank_mask:0xf")
        if OM == 0:
            P.label("L_OB")
            post(GB)
            P("s_branch L_OOK")
        def omid():
            P.label("L_OCHK2")
            P("s_waitcnt vmcnt(0)")
            self.tagcheck(list(range(GA+4, GA+8)), vT+2)
            P("s_cbranch_vccz L_OO")
            ol(GA)
            P(f"s_sub_u32 s{sCNT}, s{sCNT}, 1")
            P("s_cbranch_scc0 L_OCHK2")
            P.label("L_OO")
        if OM < 2: P.label("L_OA")
        post(GA, omid if OM in (2, 3) else None, GB+4 if OM == 3 else None)
        P.label("L_OOK")
        self.stamp("o_got"); self.snap(1); self.snap(2)
        a, b_ = vT, vT+1
        GO = GR
        P(f"v_permlane32_swap_b32 {v(GO)}, {v(GO+1)}")
        P(f"v_add_f32_dpp {v(a)}, {v(a)}, {v(a)} row_ror:8 row_mask:0xf bank_mask:0xf")
        P(f"v_permlane32_swap_b32 {v(GO+2)}, {v(GO+3)}")
        P(f"v_mov_b32 {v(b_)}, {v(a)}")
        P(f"v_add_f32 {v(GO)}, {v(GO)}, {v(GO+1)}")
        P(f"v_permlane16_swap_b32 {v(a)}, {v(b_)}")
        P(f"v_add_f32 {v(GO+2)}, {v(GO+2)}, {v(GO+3)}")
        P(f"v_add_f32 {v(a)}, {v(a)}, {v(b_)}")
        P(f"v_permlane16_swap_b32 {v(GO)}, {v(GO+2)}")
        P(f"v_mov_b32 {v(b_)}, {v(a)}")
        P(f"v_add_f32 {v(GO)}, {v(GO)}, {v(GO+2)}")
        P(f"v_permlane32_swap_b32 {v(a)}, {v(b_)}")
        P(f"v_add_f32_dpp {v(GO)}, {v(GO)}, {v(GO)} row_ror:4 row_mask:0xf bank_mask:0xf")
        P(f"v_add_f32 {v(a)}, {v(a)}, {v(b_)}")
        P(f"v_add_f32_dpp {v(GO)}, {v(GO)}, {v(GO)} row_ror:8 row_mask:0xf bank_mask:0xf")
        P(f"v_rcp_f32 {v(a)}, {v(a)}")
        P(f"v_mul_f32 {v(GO)}, {v(GO)}, {v(a)}")
        P(f"v_cvt_pk_bf16_f32 {v(GO)}, {v(GO)}, {v(GO)}")
        F = K; FB = K + 16; FR = X + 48
        def fload(B):
            for i in range(4):
                P(f"buffer_load_dwordx4 {v(B+4*i,4)}, {v(vF+i)}, {srd(S_WS)}, s{sFINLD} offen sc1")
        if o.get("fearly", 1):
            P(f"s_cmp_ge_u32 s{sR}, {NRED}")
            P("s_cbranch_scc1 L_FE_DONE")
            fload(F)
            P.label("L_FE_DONE")
        SEL = X
        D2 = vT + 4
        for u in range(8):
            mk = vM if (u & 1) == 0 else vM2
            for k in range(4):
                P(f"v_and_b32_dpp {v(SEL+4*u+k)}, {v(GO)}, {v(mk+k)} row_newbcast:{u>>1} row_mask:0xf bank_mask:0xf")
            if u >= 1:
                P(f"v_mfma_f32_16x16x32_bf16 {v(D2,4)}, {v(SEL+4*(u-1),4)}, {v(W+4*(u-1),4)}, {'0' if u==1 else v(D2,4)}")
        P(f"v_mfma_f32_16x16x32_bf16 {v(D2,4)}, {v(SEL+28,4)}, {v(W+28,4)}, {v(D2,4)}")
        P(f"v_lshrrev_b32 {v(vT)}, 5, {v(vL)}")
        P(f"v_lshlrev_b32 {v(vT)}, 9, {v(vT)}")
        P(f"v_and_b32 {v(vT+1)}, 15, {v(vL)}")
        P(f"v_lshl_or_b32 {v(vT)}, {v(vT+1)}, 5, {v(vT)}")
        P(f"v_bfe_u32 {v(vT+1)}, {v(vL)}, 4, 1")
        P(f"v_lshl_or_b32 {v(vT)}, {v(vT+1)}, 4, {v(vT)}")
        P(f"s_lshl_b32 s{sT3}, s{sW}, 10")
        P(f"v_add_u32 {v(vT)}, s{sT3}, {v(vT)}")
        P(f"ds_write_b128 {v(vT)}, {v(D2,4)} offset:{L_QRED}")
        P("s_waitcnt lgkmcnt(0)")
        P("s_barrier")
        self.stamp("wo_done")
        P(f"s_cmp_lg_u32 s{sW}, 0")
        P("s_cbranch_scc1 L_APUB_DONE")
        for k in range(4):
            P(f"ds_read_b128 {v(X+4*k,4)}, {v(vL16)} offset:{L_QRED+1024*k}")
        P("s_waitcnt lgkmcnt(0)")
        self.sum4(X)
        for k in range(4):
            P(f"v_and_or_b32 {v(X+k)}, {v(X+k)}, s{sMASK}, {v(vTau)}")
        P(f"buffer_store_dwordx4 {v(X,4)}, {v(vL16)}, {srd(S_WS)}, s{sFINST} offen sc1")
        P.label("L_APUB_DONE")
        P("s_nop 1")
        self.stamp("a_pub")
        P(f"s_cmp_ge_u32 s{sR}, {NRED}")
        P("s_cbranch_scc1 L_FIN_DONE")
        if not o.get("fearly", 1): fload(F)
        fload(FB)
        P(f"s_cmp_lt_u32 s{sW}, 2")
        P("s_cbranch_scc1 L_FCO")
        P(f"v_mov_b32 {v(vCA)}, {v(vCB)}")
        P.label("L_FCO")
        P(f"v_and_b32 {v(vT+1)}, 7, {v(vL)}")
        P(f"v_lshlrev_b32 {v(vT+1)}, 4, {v(vT+1)}")
        P(f"v_bfe_u32 {v(vT+2)}, {v(vWo)}, 10, 2")
        P(f"v_lshl_add_u32 {v(vT+1)}, {v(vT+2)}, 2, {v(vT+1)}")
        P(f"s_lshl_b32 s{sT3}, s{sW}, 7")
        P(f"v_add_u32 {v(vT+1)}, s{sT3}, {v(vT+1)}")
        P(f"v_lshlrev_b32 {v(vT+2)}, 2, {v(vL)}")
        P(f"v_lshlrev_b32 {v(vT+3)}, 1, {v(vL)}")
        P(f"s_min_u32 s{sCNT}, s{sCNT}, 20000")
        P.label("L_FG")
        P("s_waitcnt vmcnt(4)")
        self.tagcheck(list(range(F, F+16)), vT)
        P("s_cbranch_vccz L_FA")
        fload(F)
        P("s_waitcnt vmcnt(4)")
        self.tagcheck(list(range(FB, FB+16)), vT)
        P("s_cbranch_vccz L_FB")
        fload(FB)
        P(f"s_sub_u32 s{sCNT}, s{sCNT}, 1")
        P("s_cbranch_scc0 L_FG")
        def fpost(B):
            P(f"v_pk_add_f32 {v(B,2)}, {v(B,2)}, {v(B+4,2)}")
            P(f"v_pk_add_f32 {v(B+2,2)}, {v(B+2,2)}, {v(B+6,2)}")
            P(f"v_pk_add_f32 {v(B+8,2)}, {v(B+8,2)}, {v(B+12,2)}")
            P(f"v_pk_add_f32 {v(B+10,2)}, {v(B+10,2)}, {v(B+14,2)}")
            P(f"v_pk_add_f32 {v(FR,2)}, {v(B,2)}, {v(B+8,2)}")
            P(f"v_pk_add_f32 {v(FR+2,2)}, {v(B+2,2)}, {v(B+10,2)}")
        P.label("L_FB")
        fpost(FB)
        P("s_branch L_FOK")
        P.label("L_FA")
        fpost(F)
        P.label("L_FOK")
        self.stamp("f_got")
        F = FR
        P(f"v_permlane32_swap_b32 {v(F)}, {v(F+1)}")
        P(f"v_permlane32_swap_b32 {v(F+2)}, {v(F+3)}")
        P(f"v_add_f32 {v(F)}, {v(F)}, {v(F+1)}")
        P(f"v_add_f32 {v(F+2)}, {v(F+2)}, {v(F+3)}")
        P(f"v_permlane16_swap_b32 {v(F)}, {v(F+2)}")
        P(f"v_add_f32 {v(F)}, {v(F)}, {v(F+2)}")
        P(f"v_add_f32_dpp {v(F)}, {v(F)}, {v(F)} row_ror:8 row_mask:0xf bank_mask:0xf")
        P(f"v_mul_f32 {v(F)}, {v(F)}, {v(vCA)}")
        P(f"ds_write_b32 {v(vT+1)}, {v(F)} offset:{L_F}")
        P("s_waitcnt lgkmcnt(0)")
        P("s_barrier")
        P(f"s_cmp_lg_u32 s{sW}, 0")
        P("s_cbranch_scc1 L_FIN_DONE")
        P("s_mov_b32 exec_hi, 0")
        P(f"ds_read2_b32 {v(F,2)}, {v(vT+2)} offset0:{L_F//4} offset1:{L_F//4+32}") if False else None
        P(f"v_add_u32 {v(vT+2)}, {L_F}, {v(vT+2)}")
        P(f"ds_read2_b32 {v(F,2)}, {v(vT+2)} offset0:0 offset1:32")
        P(f"ds_read2_b32 {v(F+2,2)}, {v(vT+2)} offset0:64 offset1:96")
        P(f"s_lshl_b32 s{sT4}, s{sR}, 6")
        P("s_waitcnt lgkmcnt(0)")
        P(f"v_pk_add_f32 {v(F,2)}, {v(F,2)}, {v(F+2,2)}")
        P(f"v_add_f32 {v(F)}, {v(F)}, {v(F+1)}")
        P(f"v_cvt_pk_bf16_f32 {v(F)}, {v(F)}, {v(F)}")
        P(f"buffer_store_short {v(F)}, {v(vT+3)}, {srd(S_OUT)}, s{sT4} offen")
        P(f"s_cmp_lg_u32 s{sR}, 0")
        P("s_cbranch_scc1 L_FIN_DONE")
        P(f"v_mov_b32 {v(vT+2)}, s{sE}")
        P(f"v_mov_b32 {v(vT+3)}, 0")
        P("s_mov_b64 exec, 1")
        P(f"buffer_store_dword {v(vT+2)}, {v(vT+3)}, {srd(S_WS)}, 0 offen sc1")
        P.label("L_FIN_DONE")
        P("s_mov_b64 exec, -1")
        self.stamp("end")
        if self.prof:
            P("s_waitcnt lgkmcnt(0)")
            P(f"s_lshl_b32 s{sT3}, s2, 2")
            P(f"s_add_u32 s{sT3}, s{sT3}, s{sW}")
            P(f"s_lshl_b32 s{sT3}, s{sT3}, 7")
            P(f"s_add_u32 s{sT3}, s{sT3}, {PROF_OFF}")
            P("s_getreg_b32 s59, hwreg(HW_REG_HW_ID)")
            P(f"v_mov_b32 {v(X)}, s100")
            for i in range(15):
                P(f"v_mov_b32 {v(X+1+i)}, " + (f"s{4+2*i}" if i < self.nst else f"s{sCNT}"))
            for i in range(4):
                P(f"v_mov_b32 {v(X+16+i)}, s{56+i}")
            P(f"v_mov_b32 {v(vT)}, 0")
            P("s_mov_b64 exec, 1")
            for k in range(5):
                P(f"buffer_store_dwordx4 {v(X+4*k,4)}, {v(vT)}, {srd(S_WS)}, s{sT3} offen offset:{16*k}")
        P.label("L_END")
        P("s_endpgm")

    def sum4(self, B):
        P = self.P
        P(f"v_pk_add_f32 {v(B,2)}, {v(B,2)}, {v(B+4,2)}")
        P(f"v_pk_add_f32 {v(B+2,2)}, {v(B+2,2)}, {v(B+6,2)}")
        P(f"v_pk_add_f32 {v(B+8,2)}, {v(B+8,2)}, {v(B+12,2)}")
        P(f"v_pk_add_f32 {v(B+10,2)}, {v(B+10,2)}, {v(B+14,2)}")
        P(f"v_pk_add_f32 {v(B,2)}, {v(B,2)}, {v(B+8,2)}")
        P(f"v_pk_add_f32 {v(B+2,2)}, {v(B+2,2)}, {v(B+10,2)}")

    def gate(self):
        P = self.P
        A = GX; B = GX + 4; T = V + 40
        acc = T + 6
        P(f"v_mov_b32 {v(acc)}, 0")
        for k in range(4):
            P(f"v_lshlrev_b32 {v(T)}, 16, {v(A+k)}")
            P(f"v_and_b32 {v(T+1)}, s{sHI}, {v(A+k)}")
            P(f"v_lshlrev_b32 {v(T+2)}, 16, {v(B+k)}")
            P(f"v_and_b32 {v(T+3)}, s{sHI}, {v(B+k)}")
            P(f"v_pk_mul_f32 {v(T,2)}, {v(T,2)}, {v(T+2,2)}")
            P(f"v_cvt_pk_bf16_f32 {v(T+4)}, {v(T)}, {v(T+1)}")
            P(f"v_lshlrev_b32 {v(T)}, 16, {v(T+4)}")
            P(f"v_and_b32 {v(T+1)}, s{sHI}, {v(T+4)}")
            P(f"v_add_f32 {v(acc)}, {v(acc)}, {v(T)}")
            P(f"v_add_f32 {v(acc)}, {v(acc)}, {v(T+1)}")
        for n in (8, 4, 2, 1):
            P(f"v_add_f32_dpp {v(acc)}, {v(acc)}, {v(acc)} row_ror:{n} row_mask:0xf bank_mask:0xf")
        P(f"v_mov_b32 {v(T)}, {v(acc)}")
        P(f"v_permlane16_swap_b32 {v(acc)}, {v(T)}")
        P(f"v_add_f32 {v(acc)}, {v(acc)}, {v(T)}")
        P(f"v_mov_b32 {v(T)}, {v(acc)}")
        P(f"v_permlane32_swap_b32 {v(acc)}, {v(T)}")
        P(f"v_add_f32 {v(acc)}, {v(acc)}, {v(T)}")
        P(f"v_cvt_pk_bf16_f32 {v(acc)}, {v(acc)}, {v(acc)}")
        P(f"v_and_b32 {v(acc)}, s{sHI}, {v(acc)}")
        P(f"v_mul_f32 {v(acc)}, s{sLOG2E}, {v(acc)}")
        P(f"v_exp_f32_e64 {v(acc)}, -{v(acc)}")
        P(f"v_add_f32 {v(acc)}, 1.0, {v(acc)}")
        P(f"v_rcp_f32 {v(acc)}, {v(acc)}")
        P(f"v_cvt_pk_bf16_f32 {v(acc)}, {v(acc)}, {v(acc)}")
        P(f"v_and_b32 {v(vCA)}, s{sHI}, {v(acc)}")
        P(f"v_mov_b32 {v(vCA+1)}, {v(vCA)}")
        P(f"v_sub_f32 {v(T)}, 1.0, {v(vCA)}")
        P(f"v_cvt_pk_bf16_f32 {v(T)}, {v(T)}, {v(T)}")
        P(f"v_and_b32 {v(vCB)}, s{sHI}, {v(T)}")
        P(f"v_mov_b32 {v(vCB+1)}, {v(vCB)}")

def build(prof=False, nt=True, opts=None):
    g = G(prof, nt, opts)
    g.gen()
    body = g.P.finish(verbose=True)
    body = body.replace("CODE_LAST", str(opts.get("codelast", 6400)))
    hdr = open("gated_mix__sliding_block_cached__sliding_block_cached__decode.s.ref").read().split("\n")
    top = []
    for ln in hdr:
        if ln.startswith("; @launch"):
            top.append(f"; @launch grid=(256,1,1) block=(256,1,1) lds={opts.get('lds', LDS_BYTES)}")
        elif ln.startswith(KNAME + ":"):
            top.append(ln); break
        else:
            top.append(ln)
    tail = f"""
.section .rodata,"a"
.p2align 6
.amdhsa_kernel {KNAME}
  .amdhsa_next_free_vgpr 256
  .amdhsa_next_free_sgpr 102
  .amdhsa_accum_offset 256
  .amdhsa_group_segment_fixed_size 0
  .amdhsa_kernarg_size 112
  .amdhsa_user_sgpr_count 2
  .amdhsa_user_sgpr_kernarg_segment_ptr 1
  .amdhsa_system_sgpr_workgroup_id_x 1
.end_amdhsa_kernel
"""
    return "\n".join(top) + "\n" + body + tail, g.stnames

if __name__ == "__main__":
    ap = argparse.ArgumentParser()
    ap.add_argument("-o", default="gated_mix__sliding_block_cached__sliding_block_cached__decode.s")
    ap.add_argument("--prof", action="store_true")
    ap.add_argument("--no-nt", action="store_true")
    ap.add_argument("--opt", default="")
    a = ap.parse_args()
    opts = {}
    for kv in a.opt.split(","):
        if kv: k_, v_ = kv.split("="); opts[k_] = int(v_)
    txt, names = build(a.prof, not a.no_nt, opts)
    open(a.o, "w").write(txt)
    print("stamps:", ",".join(names))
    open(a.o + ".names", "w").write(",".join(names))
```
